```python
import torch

def _softmax(x, axis=-1):
    return torch.softmax(x, dim=axis)
def _gelu(x):
    return torch.nn.functional.gelu(x, approximate="tanh")
def _silu(x):
    return torch.nn.functional.silu(x)
def _sigmoid(x):
    return torch.sigmoid(x)
def _layernorm(x, axis=-1, eps=1e-5):
    m = x.mean(dim=axis, keepdim=True)
    v = x.var(dim=axis, keepdim=True, unbiased=False)
    return (x - m) / torch.sqrt(v + eps)
def _scatter_add(tgt, idx, src, axis=0):
    return tgt.clone().index_add_(axis, idx, src)
def _segment_sum(src, seg, n):
    out = torch.zeros((n,) + src.shape[1:], dtype=src.dtype)
    return out.index_add_(0, seg, src)
def _pad(x, pw):
    flat = tuple(v for pair in reversed(pw) for v in pair)
    return torch.nn.functional.pad(x, flat)

kernel_name = 'gated_mix__linear_kernel_hedgehog__linear_kernel_hedgehog__prompt'

def setup_inputs():

    _w = (lambda a: (lambda t: t.to(torch.bfloat16) if t.is_floating_point() else t)(torch.as_tensor(a)))
    def _A_setup():
        B, S, D, H = 1, 2048, 448, 16
        Dh = D // H
        return {
            "x": _w((lambda *s: torch.randn(*s, dtype=torch.bfloat16) * 0.05)(B, S, D)),
            "wqkv": _w((lambda *s: torch.randn(*s, dtype=torch.bfloat16) * 0.8)(D, 3 * D)),
            "w_phi": _w((lambda *s: torch.randn(*s, dtype=torch.bfloat16) * 0.8)(H, Dh, Dh) * (Dh ** -0.5)),
            "wo": _w((lambda *s: torch.randn(*s, dtype=torch.bfloat16) * 0.05)(D, D)),
        }
    _A_in = _A_setup()

    def _B_setup():
        B, S, D, H = 1, 2048, 448, 16
        Dh = D // H
        return {
            "x": _w((lambda *s: torch.randn(*s, dtype=torch.bfloat16) * 0.05)(B, S, D)),
            "wqkv": _w((lambda *s: torch.randn(*s, dtype=torch.bfloat16) * 0.8)(D, 3 * D)),
            "w_phi": _w((lambda *s: torch.randn(*s, dtype=torch.bfloat16) * 0.8)(H, Dh, Dh) * (Dh ** -0.5)),
            "wo": _w((lambda *s: torch.randn(*s, dtype=torch.bfloat16) * 0.05)(D, D)),
        }
    _B_in = _B_setup()

    return {
        "A_x": _A_in["x"],
        "A_wqkv": _A_in["wqkv"],
        "A_w_phi": _A_in["w_phi"],
        "A_wo": _A_in["wo"],
        "B_x": _B_in["x"],
        "B_wqkv": _B_in["wqkv"],
        "B_w_phi": _B_in["w_phi"],
        "B_wo": _B_in["wo"],
        "gate_w": _w((lambda *s: torch.randn(*s, dtype=torch.bfloat16) * 0.05)(448) * 16.0),
    }

def reference(A_x, A_wqkv, A_w_phi, A_wo, B_x, B_wqkv, B_w_phi, B_wo, gate_w):
    def _A_ref(x, wqkv, w_phi, wo):
        B, S, D = x.shape
        H = 16; Dh = D // H
        qkv = (lambda x, *d: x.permute(*d))((x @ wqkv).reshape(B, S, 3, H, Dh), 2, 0, 3, 1, 4)
        q, k, v = qkv[0], qkv[1], qkv[2]
        pq = torch.einsum("bhsd,hdf->bhsf", q, w_phi)
        pk = torch.einsum("bhsd,hdf->bhsf", k, w_phi)
        phi_q = torch.concatenate([_softmax(pq, axis=-1), _softmax(-pq, axis=-1)], axis=-1)
        phi_k = torch.concatenate([_softmax(pk, axis=-1), _softmax(-pk, axis=-1)], axis=-1)
        kv = torch.einsum("bhsf,bhsd->bhfd", phi_k, v)
        z  = torch.einsum("bhsf->bhf", phi_k)
        num = torch.einsum("bhqf,bhfd->bhqd", phi_q, kv)
        den = torch.einsum("bhqf,bhf->bhq", phi_q, z)[..., None] + 1e-6
        o = num / den
        return (lambda x, *d: x.permute(*d))(o, 0, 2, 1, 3).reshape(B, S, D) @ wo

    def _B_ref(x, wqkv, w_phi, wo):
        B, S, D = x.shape
        H = 16; Dh = D // H
        qkv = (lambda x, *d: x.permute(*d))((x @ wqkv).reshape(B, S, 3, H, Dh), 2, 0, 3, 1, 4)
        q, k, v = qkv[0], qkv[1], qkv[2]
        pq = torch.einsum("bhsd,hdf->bhsf", q, w_phi)
        pk = torch.einsum("bhsd,hdf->bhsf", k, w_phi)
        phi_q = torch.concatenate([_softmax(pq, axis=-1), _softmax(-pq, axis=-1)], axis=-1)
        phi_k = torch.concatenate([_softmax(pk, axis=-1), _softmax(-pk, axis=-1)], axis=-1)
        kv = torch.einsum("bhsf,bhsd->bhfd", phi_k, v)
        z  = torch.einsum("bhsf->bhf", phi_k)
        num = torch.einsum("bhqf,bhfd->bhqd", phi_q, kv)
        den = torch.einsum("bhqf,bhf->bhq", phi_q, z)[..., None] + 1e-6
        o = num / den
        return (lambda x, *d: x.permute(*d))(o, 0, 2, 1, 3).reshape(B, S, D) @ wo

    x = A_x
    g = _sigmoid((x * gate_w).sum(-1, keepdims=True))
    a = _A_ref(x, A_wqkv, A_w_phi, A_wo)
    b = _B_ref(x, B_wqkv, B_w_phi, B_wo)
    return g * a + (1 - g) * b
```

```python
import re, sys

def regs_of(tok):
    tok = tok.strip()
    neg = tok.lstrip('-')
    if neg.startswith('abs(') or neg.startswith('|'):
        neg = neg.strip('|').replace('abs(', '').rstrip(')')
    m = re.fullmatch(r'([vsa])\[(\d+):(\d+)\]', neg)
    if m:
        return [(m.group(1), i) for i in range(int(m.group(2)), int(m.group(3)) + 1)]
    m = re.fullmatch(r'([vsa])(\d+)', neg)
    if m:
        return [(m.group(1), int(m.group(2)))]
    if neg == 'vcc': return [('s', 'vcc')]
    if neg in ('vcc_lo', 'vcc_hi'): return [('s', 'vcc')]
    if neg in ('exec', 'exec_lo', 'exec_hi'): return [('s', 'exec')]
    if neg == 'm0': return [('s', 'm0')]
    return []

TRANS = ('v_exp_f32', 'v_log_f32', 'v_rcp_f32', 'v_rsq_f32', 'v_sqrt_f32', 'v_sin_f32', 'v_cos_f32')

class I:
    pass

def parse(line):
    line = line.split(';')[0].strip()
    if not line or line.endswith(':') or line.startswith('.'):
        return None
    parts = line.split(None, 1)
    op = parts[0]
    ops = []
    if len(parts) > 1:
        ops = [o.strip() for o in re.split(r',(?![^\[]*\])', parts[1])]
        ops2 = []
        for o in ops:
            ops2.append(o.split()[0] if o.split() else o)
        ops = ops2
    i = I(); i.op = op; i.text = line
    i.dst = []; i.src = []; i.kind = 'other'; i.passes = 0; i.srcc = []; i.ab = []
    if op.startswith('v_mfma'):
        i.kind = 'mfma'
        i.passes = 8 if '32x32x16' in op else 4
        i.dst = regs_of(ops[0]); i.ab = regs_of(ops[1]) + regs_of(ops[2]); i.srcc = regs_of(ops[3]); i.src = i.ab + i.srcc
    elif op.startswith('v_cmp'):
        i.kind = 'valu'; i.dst = regs_of(ops[0]); i.src = sum((regs_of(o) for o in ops[1:]), [])
        if op.startswith('v_cmpx'): i.dst += [('s', 'exec')]
    elif op.startswith('v_readfirstlane') or op.startswith('v_readlane'):
        i.kind = 'valu'; i.dst = regs_of(ops[0]); i.src = sum((regs_of(o) for o in ops[1:]), [])
    elif op.startswith('v_permlane'):
        i.kind = 'valu'; i.dst = regs_of(ops[0]) + regs_of(ops[1]); i.src = list(i.dst)
    elif op.startswith('v_'):
        i.kind = 'valu'; i.dst = regs_of(ops[0]); i.src = sum((regs_of(o) for o in ops[1:]), [])
        if op.startswith(('v_add_co', 'v_sub_co', 'v_addc_co', 'v_subb_co')):
            i.dst += regs_of(ops[1]); i.src = sum((regs_of(o) for o in ops[2:]), [])
        if op.startswith(('v_fmac', 'v_dot2c', 'v_mac')) or '_dpp' in op: i.src += i.dst
        if op.startswith('v_cndmask') and len(ops) == 3: i.src += [('s', 'vcc')]
    elif op.startswith('ds_'):
        i.kind = 'ds'
        if op.startswith('ds_read') or op.startswith('ds_bpermute') or op.startswith('ds_swizzle'):
            i.dst = regs_of(ops[0]); i.src = sum((regs_of(o) for o in ops[1:]), [])
        else:
            i.src = sum((regs_of(o) for o in ops), [])
    elif op.startswith('buffer_') or op.startswith('global_'):
        i.kind = 'vmem'
        lds = ' lds' in line or 'load_lds' in op
        if 'store' in op or lds or 'atomic' in op:
            i.src = sum((regs_of(o) for o in ops), [])
            if lds: i.src += [('s', 'm0')]; i.lds = True
            if 'store' in op:
                i.store_data = regs_of(ops[0]) if op.startswith('buffer_') else regs_of(ops[1])
                i.wide = ('x4' in op or 'x3' in op)
        elif op in ('buffer_inv', 'buffer_wbl2'):
            pass
        else:
            i.dst = regs_of(ops[0]); i.src = sum((regs_of(o) for o in ops[1:]), [])
    elif op.startswith('s_'):
        i.kind = 'salu'
        if op == 's_nop':
            i.nop = int(ops[0], 0) + 1
        elif op.startswith(('s_cmp', 's_cbranch', 's_branch', 's_waitcnt', 's_barrier', 's_endpgm', 's_sleep', 's_setprio')):
            i.src = sum((regs_of(o) for o in ops), [])
        else:
            i.dst = regs_of(ops[0]) if ops else []
            i.src = sum((regs_of(o) for o in ops[1:]), [])
            if 'saveexec' in op: i.dst += [('s', 'exec')]
    return i

def states(i):
    return getattr(i, 'nop', 1)

def check(text):
    ins = []
    for ln, line in enumerate(text.split('\n'), 1):
        i = parse(line)
        if i is not None:
            i.ln = ln; ins.append(i)
    errs = []
    W = 24
    for n, c in enumerate(ins):
        dist = 0
        for p in reversed(ins[max(0, n - W):n]):
            def need(k, why):
                if dist < k:
                    errs.append(f"line {c.ln}: '{c.text}' needs {k} wait states after line {p.ln} '{p.text}' ({why}), has {dist}")
            pd = set(p.dst); cs = set(c.src); cd = set(c.dst)
            pv = {r for r in pd if r[0] in 'va'}
            ps = {r for r in pd if r[0] == 's'}
            if p.kind == 'valu':
                if c.kind == 'mfma' and pv & cs: need(2, 'valu->mfma')
                if c.op.startswith('v_permlane') and pv & cs: need(2, 'valu->permlane')
                if '_dpp' in c.op and pv & cs: need(2, 'valu->dpp')
                if c.op.startswith(('v_readfirstlane', 'v_readlane')) and pv & cs: need(1, 'valu->readlane')
                if p.op.startswith(TRANS) and c.kind in ('valu',) and not c.op.startswith(TRANS) and pv & cs: need(1, 'trans->valu')
                if p.op.startswith(TRANS) and c.kind in ('mfma', 'ds', 'vmem') and pv & cs: need(1, 'trans->other')
                if c.kind == 'vmem' and ps & cs: need(5, 'valu sgpr->vmem')
                if c.kind == 'valu' and (ps & cs): need(2, 'valu sgpr->valu')
                if c.kind == 'salu' and (ps & cs) and not c.op.startswith('s_waitcnt') and 'saveexec' not in c.op: need(1, 'valu sgpr->salu (conservative)')
                if p.op.startswith('v_dot2') and c.kind in ('valu','mfma','ds','vmem') and c.op != p.op and (pv & cs or pv & cd): need(3, 'dot->other')
                if ('s', 'exec') in ps and c.kind == 'mfma': need(4, 'valu exec->mfma')
            if p.kind == 'mfma':
                lat = {8: 12, 4: 8}[p.passes]
                if c.kind in ('valu', 'ds', 'vmem') and (pv & cs or pv & cd): need(lat, 'mfma D->valu/mem')
                if c.kind == 'mfma':
                    if pv & set(c.ab): need(lat, 'mfma D->mfma A/B')
                    if pv & set(c.srcc) and (p.dst != c.srcc or p.passes != c.passes): need({8: 10, 4: 6}[p.passes], 'mfma D->mfma C partial')
                    if pv & cd and p.dst != c.dst: need(lat, 'mfma WAW partial')
                if c.kind == 'valu' and set(p.srcc) & cd: need({8: 7, 4: 3}[p.passes], 'mfma srcC WAR')
            if p.kind == 'salu' and ('s', 'm0') in ps and getattr(c, 'lds', False): need(1, 'm0->lds dma')
            if p.kind == 'vmem' and getattr(p, 'wide', False) and c.kind == 'valu' and set(p.store_data) & cd: need(2, 'store data WAR')
            if p.kind == 'salu' and ('s', 'exec') in ps and '_dpp' in c.op: need(0, '')
            dist += states(p)
            if dist >= 20: break
    return errs

if __name__ == '__main__':
    e = check(open(sys.argv[1]).read())
    for x in e: print(x)
    print(len(e), 'hazard findings')
```

```python
import sys, argparse
KNAME = "gated_mix__linear_kernel_hedgehog__linear_kernel_hedgehog__prompt_kernel"

class A:
    def __init__(self): self.l = []
    def __call__(self, s): self.l.append("    " + s)
    def label(self, s): self.l.append(s + ":")
    def c(self, s): self.l.append("    ; " + s)
    def text(self): return "\n".join(self.l) + "\n"

def vr(b, n=1): return f"v{b}" if n == 1 else f"v[{b}:{b+n-1}]"
def sr(b, n=1): return f"s{b}" if n == 1 else f"s[{b}:{b+n-1}]"

XBYTES = 2048 * 448 * 2
WBYTES = 448 * 1344 * 2
WOBYTES = 448 * 448 * 2
PHIBYTES = 16 * 28 * 28 * 2
WS_FLAG1 = 0x0
WS_FLAG2 = 0x1000
WS_EPOCH = 0x4000
WS_PROF = 0x8000
WS_P = 0x100000
WS_O = 0x300000
WS_DBG = 0x800000
WS_SIZE = 0x1000000
S0, S1, S2, S3 = 0, 32768, 65536, 98304
LM = 131072
L_WQ = S3
L_PHI = 155648
L_GATE = 159744
L_PHIS = S0
L_VS = S1
L_KVF = LM
L_RED = LM + 8192
LOG2E = 0x3FB8AA3B

s_AX, s_AW, s_APHI, s_AWO, s_BX, s_BW, s_BPHI, s_BWO = 4, 6, 8, 10, 12, 14, 16, 18
s_GATE, s_OUT, s_DBG, s_WS = 20, 22, 24, 26
SX, SW, SWS, SOA, SOB, SOUT, SMI = 28, 32, 36, 40, 44, 48, 52
sWV, sTB, sBR, sH2, sHP, sC0, sC = 56, 57, 58, 59, 60, 61, 62
sXbase, sWbase, sT, sU, sLdsX, sLdsW = 63, 64, 65, 66, 67, 68
sTAG, sJ, sLOG2E, sNLOG2E = 69, 70, 71, 72
sM0, sM1 = 74, 75
sT2, sT3, sT4 = 76, 77, 78
sC_LO, sC_HI = 79, 80
sT64, sCT = 81, 82
sSPIN = 83
sEX0 = 84
sGS = 86
sPROF = 88

vLANE = 1
aK, aV, aQ = 16, 32, 32
WF = 48
PF = 80
KB = 88
EPL, EMI = 96, 110
EP, EM = 124, 132
vG = 140
vGA = 141
vWQ = 142
vPHW = 143
XF = 144
vXA, vXB = 96, 100
vWA, vWB = 104, 105
vDX0, vDX1, vDW = 106, 107, 108
vVSW = 2
vCONSTV = 3
vDO = 4
vT0, vT1, vT2, vT3, vT4, vT5 = 5, 6, 7, 8, 9, 10
vZERO4 = 12

def srd(a, d, base, size):
    a(f"s_mov_b32 s{d}, s{base}")
    a(f"s_mov_b32 s{d+1}, s{base+1}")
    a(f"s_mov_b32 s{d+2}, {size}")
    a(f"s_mov_b32 s{d+3}, 0x00020000")

def stamp(a, cfg, idx):
    if cfg.prof:
        a(f"s_memrealtime s[100:101]")
        a("s_waitcnt lgkmcnt(0)")
        a(f"s_mov_b32 s{sPROF+idx}, s100")

def issue_kv_chunk(a, slot):
    base = slot * 32768
    a(f"s_lshl_b32 s{sT}, s{sC}, 7")
    a(f"s_add_u32 s{sT}, s{sT}, s{sXbase}")
    a(f"s_add_u32 m0, s{sLdsX}, {base}")
    a(f"s_mul_i32 s{sU}, s{sC}, {64*2688}")
    a(f"buffer_load_dwordx4 v{vDX0}, s[{SX}:{SX+3}], s{sT} offen lds")
    a(f"s_add_u32 m0, s{sLdsX}, {base+1024}")
    a(f"s_add_u32 s{sU}, s{sU}, s{sWbase}")
    a(f"buffer_load_dwordx4 v{vDX1}, s[{SX}:{SX+3}], s{sT} offen lds")
    a(f"s_mov_b64 exec, s[{sM0}:{sM1}]")
    a(f"s_add_u32 m0, s{sLdsW}, {base+16384}")
    a(f"s_add_u32 s{sT}, s{sU}, 896")
    a(f"buffer_load_dwordx4 v{vDW}, s[{SW}:{SW+3}], s{sT} offen lds")
    a(f"s_add_u32 m0, s{sLdsW}, {base+16384+8192}")
    a(f"s_add_u32 s{sT}, s{sU}, 1792")
    a(f"buffer_load_dwordx4 v{vDW}, s[{SW}:{SW+3}], s{sT} offen lds")
    a(f"s_mov_b64 exec, -1")
    a(f"s_add_u32 s{sC}, s{sC}, 1")
    a(f"s_cmp_eq_u32 s{sC}, 7")
    a(f"s_cselect_b32 s{sC}, 0, s{sC}")

def issue_wq(a, positions):
    a(f"s_mov_b64 exec, s[{sM0}:{sM1}]")
    for pos in positions:
        a(f"s_add_u32 s{sT}, s{sC0}, {pos}")
        a(f"s_cmp_ge_u32 s{sT}, 7")
        a(f"s_cselect_b32 s{sU}, 7, 0")
        a(f"s_sub_u32 s{sT}, s{sT}, s{sU}")
        a(f"s_mul_i32 s{sT}, s{sT}, {64*2688}")
        a(f"s_add_u32 m0, s{sLdsW}, {L_WQ + 8192*pos}")
        a(f"s_add_u32 s{sT}, s{sT}, s{sWbase}")
        a(f"buffer_load_dwordx4 v{vDW}, s[{SW}:{SW+3}], s{sT} offen lds")
    a(f"s_mov_b64 exec, -1")

def issue_wo(a, groups):
    for (c, isB) in groups:
        a(f"s_add_u32 s{sT}, s{sT4}, {c}")
        a(f"s_lshl_b32 m0, s{sT}, 10")
        if isB:
            a(f"s_sub_u32 s{sT}, s{sT}, 56")
        a(f"s_mul_i32 s{sT}, s{sT}, {8*896}")
        a(f"s_add_u32 s{sT}, s{sT}, s{sCT}")
        S = SOB if isB else SOA
        a(f"buffer_load_dwordx4 v{vDO}, s[{S}:{S+3}], s{sT} offen lds")

def softmax_prep(a, P, cfg):
    t = [vT0, vT1, vT2, vT3, vT4, vT5]
    a(f"v_max3_f32 v{vT2}, v{P}, v{P+1}, v{P+2}")
    a(f"v_max3_f32 v{vT3}, v{P+3}, v{P+4}, v{P+5}")
    a(f"v_max3_f32 v{vT4}, v{P+6}, v{P+7}, v{P+8}")
    a(f"v_max3_f32 v{vT5}, v{P+9}, v{P+10}, v{P+11}")
    a(f"v_max3_f32 v{vT2}, v{P+12}, v{P+13}, v{vT2}")
    a(f"v_max3_f32 v{vT3}, v{vT3}, v{vT4}, v{vT5}")
    a(f"v_max_f32 v{vT0}, v{vT2}, v{vT3}")
    a(f"v_min3_f32 v{vT2}, v{P}, v{P+1}, v{P+2}")
    a(f"v_min3_f32 v{vT3}, v{P+3}, v{P+4}, v{P+5}")
    a(f"v_min3_f32 v{vT4}, v{P+6}, v{P+7}, v{P+8}")
    a(f"v_min3_f32 v{vT5}, v{P+9}, v{P+10}, v{P+11}")
    a(f"v_min3_f32 v{vT2}, v{P+12}, v{P+13}, v{vT2}")
    a(f"v_min3_f32 v{vT3}, v{vT3}, v{vT4}, v{vT5}")
    a(f"v_min_f32 v{vT1}, v{vT2}, v{vT3}")
    a(f"v_sub_f32 v{vT1}, 0, v{vT1}")
    a("s_nop 1")
    a(f"v_permlane32_swap_b32 v{vT0}, v{vT1}")
    a("s_nop 1")
    a(f"v_max_f32 v{vT0}, v{vT0}, v{vT1}")
    a(f"v_mul_f32 v{vT0}, s{sNLOG2E}, v{vT0}")
    a(f"v_mov_b32 v{vT1}, v{vT0}")
    a("s_nop 1")
    a(f"v_permlane32_swap_b32 v{vT0}, v{vT1}")
    a("s_nop 1")

def exps(a, P):
    for r in range(14):
        a(f"v_fma_f32 v{EPL+r}, v{P+r}, s{sLOG2E}, v{vT0}")
        a(f"v_fma_f32 v{EMI+r}, v{P+r}, s{sNLOG2E}, v{vT1}")
    for r in range(14):
        a(f"v_exp_f32 v{EPL+r}, v{EPL+r}")
        a(f"v_exp_f32 v{EMI+r}, v{EMI+r}")

def gen(cfg):
    a = A()
    a.label(KNAME)
    a("s_cmp_ge_u32 s2, 256")
    a("s_cbranch_scc1 L_exit")
    a("s_load_dwordx16 s[4:19], s[0:1], 0")
    a("s_load_dwordx8 s[20:27], s[0:1], 64")
    if cfg.prof:
        for k in range(12): a(f"s_mov_b32 s{sPROF+k}, 0")
    a(f"v_lshrrev_b32 v{vT0}, 6, v0")
    a(f"v_and_b32 v{vLANE}, 63, v0")
    a(f"v_readfirstlane_b32 s{sWV}, v{vT0}")
    a(f"s_and_b32 s{sH2}, s2, 7")
    a(f"s_lshr_b32 s{sJ}, s2, 3")
    a(f"s_and_b32 s{sTB}, s{sJ}, 15")
    a(f"s_lshr_b32 s{sBR}, s{sJ}, 4")
    a(f"s_lshl_b32 s{sHP}, s{sBR}, 3")
    a(f"s_add_u32 s{sHP}, s{sHP}, s{sH2}")
    a(f"s_mul_i32 s{sC0}, s{sBR}, 3")
    a(f"s_add_u32 s{sC0}, s{sC0}, s{sTB}")
    for _ in range(2):
        a(f"s_cmp_ge_u32 s{sC0}, 7")
        a(f"s_cselect_b32 s{sT}, 7, 0")
        a(f"s_sub_u32 s{sC0}, s{sC0}, s{sT}")
    if cfg.norot:
        a(f"s_mov_b32 s{sC0}, 0")
    a(f"s_mov_b32 s{sC}, s{sC0}")
    a(f"s_min_u32 s{sT}, s{sJ}, 27")
    a(f"s_mul_i32 s{sU}, s{sT}, 37")
    a(f"s_lshr_b32 s{sU}, s{sU}, 8")
    a(f"s_lshl_b32 s{sT64}, s{sH2}, 2")
    a(f"s_add_u32 s{sT64}, s{sT64}, s{sU}")
    a(f"s_mul_i32 s{sU}, s{sU}, 7")
    a(f"s_sub_u32 s{sCT}, s{sT}, s{sU}")
    a(f"s_lshl_b32 s{sCT}, s{sCT}, 7")
    a(f"s_mov_b32 s{sLOG2E}, {LOG2E:#x}")
    a(f"s_mov_b32 s{sNLOG2E}, {LOG2E | 0x80000000:#x}")
    a(f"s_mov_b32 s{sM0}, 0xf7f77f7f")
    a(f"s_mov_b32 s{sM1}, 0xf7f77f7f")
    a(f"s_mov_b32 s{sC_LO}, 0x00003f80")
    a(f"s_mov_b32 s{sC_HI}, 0x3f800000")
    a(f"s_lshl_b32 s{sT}, s{sTB}, 7")
    a(f"s_lshl_b32 s{sU}, s{sWV}, 4")
    a(f"s_add_u32 s{sT}, s{sT}, s{sU}")
    a(f"s_mul_i32 s{sXbase}, s{sT}, 896")
    a(f"s_mul_i32 s{sWbase}, s{sWV}, {8*2688}")
    a(f"s_mul_i32 s{sT}, s{sH2}, 112")
    a(f"s_add_u32 s{sWbase}, s{sWbase}, s{sT}")
    a(f"s_lshl_b32 s{sLdsX}, s{sWV}, 11")
    a(f"s_lshl_b32 s{sLdsW}, s{sWV}, 10")
    a(f"v_lshrrev_b32 v{vT0}, 3, v{vLANE}")
    a(f"v_and_b32 v{vT1}, 7, v{vLANE}")
    a(f"v_lshrrev_b32 v{vT2}, 1, v{vT0}")
    a(f"v_xor_b32 v{vT3}, v{vT1}, v{vT2}")
    a(f"v_lshlrev_b32 v{vT3}, 4, v{vT3}")
    a(f"v_mul_u32_u24 v{vT4}, 896, v{vT0}")
    a(f"v_add_u32 v{vDX0}, v{vT4}, v{vT3}")
    a(f"v_xor_b32 v{vT3}, 64, v{vT3}")
    a(f"v_add_u32 v{vDX1}, v{vT4}, v{vT3}")
    a(f"v_add_u32 v{vDX1}, {8*896}, v{vDX1}")
    a(f"v_and_b32 v{vT3}, 1, v{vT2}")
    a(f"v_lshlrev_b32 v{vT3}, 2, v{vT3}")
    a(f"v_xor_b32 v{vT3}, v{vT1}, v{vT3}")
    a(f"v_lshlrev_b32 v{vT3}, 4, v{vT3}")
    a(f"v_mul_u32_u24 v{vT4}, 2688, v{vT0}")
    a(f"v_add_u32 v{vDW}, v{vT4}, v{vT3}")
    a(f"v_and_b32 v{vT3}, 3, v{vT2}")
    a(f"v_lshlrev_b32 v{vT3}, 1, v{vT3}")
    a(f"v_xor_b32 v{vT3}, v{vT1}, v{vT3}")
    a(f"v_lshlrev_b32 v{vT3}, 4, v{vT3}")
    a(f"v_mul_u32_u24 v{vT4}, 896, v{vT0}")
    a(f"v_add_u32 v{vDO}, v{vT4}, v{vT3}")
    a("s_waitcnt lgkmcnt(0)")
    stamp(a, cfg, 0)
    srd(a, SX, s_AX, XBYTES)
    a(f"s_cmp_eq_u32 s{sBR}, 0")
    a(f"s_cselect_b32 s{SW}, s{s_AW}, s{s_BW}")
    a(f"s_cselect_b32 s{SW+1}, s{s_AW+1}, s{s_BW+1}")
    a(f"s_mov_b32 s{SW+2}, {WBYTES}")
    a(f"s_mov_b32 s{SW+3}, 0x00020000")
    issue_kv_chunk(a, 0)
    issue_kv_chunk(a, 1)
    srd(a, SWS, s_WS, WS_SIZE)
    srd(a, SOA, s_AWO, WOBYTES)
    srd(a, SOB, s_BWO, WOBYTES)
    srd(a, SOUT, s_OUT, XBYTES)
    a(f"s_cmp_eq_u32 s{sBR}, 0")
    a(f"s_cselect_b32 s{SMI}, s{s_APHI}, s{s_BPHI}")
    a(f"s_cselect_b32 s{SMI+1}, s{s_APHI+1}, s{s_BPHI+1}")
    a(f"s_mov_b32 s{SMI+2}, {PHIBYTES}")
    a(f"s_mov_b32 s{SMI+3}, 0x00020000")
    a(f"v_lshlrev_b32 v{vT0}, 4, v{vLANE}")
    a(f"s_cmp_ge_u32 s{sWV}, 4")
    a("s_cbranch_scc1 L_gate_dma")
    a(f"s_mul_i32 s{sT}, s{sH2}, {2*1568}")
    a(f"s_lshl_b32 s{sU}, s{sWV}, 10")
    a(f"s_add_u32 s{sT}, s{sT}, s{sU}")
    a(f"s_add_u32 m0, s{sU}, {L_PHI}")
    a("s_nop 0")
    a(f"buffer_load_dwordx4 v{vT0}, s[{SMI}:{SMI+3}], s{sT} offen lds")
    a("s_branch L_gate_done")
    a.label("L_gate_dma")
    a(f"s_mov_b32 s{SMI}, s{s_GATE}")
    a(f"s_mov_b32 s{SMI+1}, s{s_GATE+1}")
    a(f"s_mov_b32 s{SMI+2}, 896")
    a(f"s_and_b32 s{sU}, s{sWV}, 1")
    a(f"s_mul_i32 s{sU}, s{sU}, 896")
    a(f"s_add_u32 m0, s{sU}, {L_GATE}")
    a(f"s_mov_b32 exec_lo, -1")
    a(f"s_mov_b32 exec_hi, 0x00ffffff")
    a(f"buffer_load_dwordx4 v{vT0}, s[{SMI}:{SMI+3}], 0 offen lds")
    a(f"s_mov_b64 exec, -1")
    a.label("L_gate_done")
    a(f"s_getpc_b64 s[{sT2}:{sT3}]")
    a.label("L_pc")
    a(f"s_and_b32 s{sT}, s{sJ}, 1")
    a(f"s_lshl_b32 s{sT}, s{sT}, 3")
    a(f"s_add_u32 s{sT}, s{sT}, s{sWV}")
    a(f"s_min_u32 s{sT}, s{sT}, CODE_KB_LEFT")
    a(f"s_lshl_b32 s{sT}, s{sT}, 10")
    a(f"v_add_u32 v{vT1}, s{sT}, v{vT0}")
    a(f"global_load_dwordx4 v[{KB}:{KB+3}], v{vT1}, s[{sT2}:{sT3}]")
    a(f"v_lshlrev_b32 v{vT1}, 20, v{vLANE}")
    a(f"v_min_u32 v{vT1}, 0x700000, v{vT1}")
    a(f"v_add_u32 v{vT1}, {WS_EPOCH}, v{vT1}")
    a(f"buffer_load_dword v{KB+4}, v{vT1}, s[{SWS}:{SWS+3}], 0 offen sc0 sc1")
    a(f"v_lshlrev_b32 v{vT1}, 19, v{vLANE}")
    a(f"buffer_load_dword v{KB+5}, v{vT1}, s[{SOUT}:{SOUT+3}], 0 offen")
    issue_kv_chunk(a, 2)
    issue_kv_chunk(a, 3)
    for i in range(4):
        a(f"v_mov_b32 v{vZERO4+i}, 0")
    a(f"v_and_b32 v{vT0}, 127, v0")
    a(f"v_lshrrev_b32 v{vT1}, 7, v0")
    a(f"v_lshlrev_b32 v{vT1}, 15, v{vT1}")
    a(f"v_lshlrev_b32 v{vT2}, 7, v{vT0}")
    a(f"v_add_u32 v{vT1}, v{vT1}, v{vT2}")
    a(f"v_and_b32 v{vT3}, 2, v{vT0}")
    a(f"v_lshlrev_b32 v{vT3}, 5, v{vT3}")
    a(f"v_xor_b32 v{vT3}, 112, v{vT3}")
    a(f"v_add_u32 v{vT1}, v{vT1}, v{vT3}")
    a(f"ds_write_b128 v{vT1}, v[{vZERO4}:{vZERO4+3}] offset:16384")
    a(f"v_lshlrev_b32 v{vT2}, 7, v0")
    a(f"v_add_u32 v{vT2}, v{vT2}, v{vT3}")
    a(f"v_add_u32 v{vT2}, {LM}, v{vT2}")
    a(f"v_cmp_gt_u32 vcc, 192, v0")
    a(f"s_and_saveexec_b64 s[{sEX0}:{sEX0+1}], vcc")
    a("s_cbranch_execz L_pad_done")
    a(f"ds_write_b128 v{vT2}, v[{vZERO4}:{vZERO4+3}]")
    a.label("L_pad_done")
    a(f"s_mov_b64 exec, -1")
    a(f"v_and_b32 v{vT0}, 31, v{vLANE}")
    a(f"v_lshrrev_b32 v{vT1}, 5, v{vLANE}")
    a(f"v_lshrrev_b32 v{vT2}, 1, v{vT0}")
    a(f"v_and_b32 v{vT2}, 7, v{vT2}")
    a(f"v_xor_b32 v{vT2}, v{vT2}, v{vT1}")
    a(f"v_lshlrev_b32 v{vT2}, 4, v{vT2}")
    a(f"s_and_b32 s{sT}, s{sWV}, 3")
    a(f"s_lshl_b32 s{sT}, s{sT}, 12")
    a(f"v_lshlrev_b32 v{vT3}, 7, v{vT0}")
    a(f"v_add_u32 v{vT3}, s{sT}, v{vT3}")
    a(f"v_add_u32 v{vT3}, v{vT3}, v{vT2}")
    for s in range(4):
        a(f"v_xor_b32 v{vXA+s}, {32*s}, v{vT3}")
        a(f"v_add_u32 v{vXB+s}, 65536, v{vXA+s}")
    a(f"v_and_b32 v{vT2}, 15, v{vLANE}")
    a(f"v_lshrrev_b32 v{vT3}, 2, v{vT2}")
    a(f"v_and_b32 v{vT2}, 3, v{vT2}")
    a(f"v_lshlrev_b32 v{vT2}, 3, v{vT2}")
    a(f"v_and_b32 v{vT4}, 16, v{vLANE}")
    a(f"v_lshlrev_b32 v{vT4}, 1, v{vT4}")
    a(f"v_add_u32 v{vT2}, v{vT2}, v{vT4}")
    a(f"s_lshr_b32 s{sT}, s{sWV}, 2")
    a(f"s_mul_i32 s{sU}, s{sT}, 56")
    a(f"v_add_u32 v{vT2}, s{sU}, v{vT2}")
    a(f"v_and_b32 v{vT4}, 2, v{vT3}")
    a(f"v_lshlrev_b32 v{vT4}, 5, v{vT4}")
    a(f"v_xor_b32 v{vT2}, v{vT2}, v{vT4}")
    a(f"v_lshlrev_b32 v{vT4}, 3, v{vT1}")
    a(f"v_add_u32 v{vT4}, v{vT4}, v{vT3}")
    a(f"v_lshlrev_b32 v{vT4}, 7, v{vT4}")
    a(f"v_add_u32 v{vWA}, v{vT4}, v{vT2}")
    a(f"v_add_u32 v{vWB}, 65536, v{vWA}")
    a(f"v_add_u32 v{vWQ}, {L_WQ}, v{vWA}")
    a(f"s_lshl_b32 s{sU}, s{sC0}, 7")
    a(f"s_add_u32 s{sU}, s{sU}, {L_GATE}")
    a(f"v_lshlrev_b32 v{vGA}, 4, v{vT1}")
    a(f"v_add_u32 v{vGA}, s{sU}, v{vGA}")
    a(f"v_and_b32 v{vT2}, 5, v{vT0}")
    a(f"v_and_b32 v{vT3}, 2, v{vT0}")
    a(f"v_lshlrev_b32 v{vT3}, 2, v{vT3}")
    a(f"v_or_b32 v{vT2}, v{vT2}, v{vT3}")
    a(f"v_and_b32 v{vT3}, 8, v{vT0}")
    a(f"v_lshrrev_b32 v{vT3}, 2, v{vT3}")
    a(f"v_or_b32 v{vT2}, v{vT2}, v{vT3}")
    a(f"v_xor_b32 v{vT2}, v{vT2}, v{vT1}")
    a(f"v_lshlrev_b32 v{vT2}, 3, v{vT2}")
    a(f"v_lshlrev_b32 v{vT3}, 7, v{vT0}")
    a(f"v_add_u32 v{vT2}, v{vT2}, v{vT3}")
    a(f"s_and_b32 s{sU}, s{sWV}, 3")
    a(f"s_lshl_b32 s{sU}, s{sU}, 12")
    a(f"s_lshl_b32 s{sT}, s{sT}, 14")
    a(f"s_add_u32 s{sU}, s{sU}, s{sT}")
    a(f"s_add_u32 s{sU}, s{sU}, {L_PHIS}")
    a(f"v_add_u32 v{vPHW}, s{sU}, v{vT2}")
    a(f"v_add_u32 v{vT2}, 2, v{vT0}")
    a(f"v_subrev_u32 v{vT3}, 2, v{vT0}")
    a(f"v_mov_b32 v{vT4}, v{vT0}")
    a(f"v_cmp_lt_u32 vcc, 25, v{vT0}")
    a("s_nop 1")
    a(f"v_cndmask_b32 v{vT4}, v{vT4}, v{vT2}, vcc")
    a(f"v_cmp_lt_u32 vcc, 27, v{vT0}")
    a("s_nop 1")
    a(f"v_cndmask_b32 v{vT4}, v{vT4}, v{vT3}, vcc")
    a(f"v_cmp_lt_u32 vcc, 29, v{vT0}")
    a("s_nop 1")
    a(f"v_cndmask_b32 v{vT4}, v{vT4}, v{vT0}, vcc")
    a(f"v_lshlrev_b32 v{vT2}, 5, v{vT1}")
    a(f"v_add_u32 v{vT4}, v{vT4}, v{vT2}")
    a(f"v_lshlrev_b32 v{vT4}, 4, v{vT4}")
    a(f"s_lshl_b32 s{sU}, s{sWV}, 11")
    a(f"s_add_u32 s{sU}, s{sU}, {L_VS}")
    a(f"v_add_u32 v{vVSW}, s{sU}, v{vT4}")
    a(f"v_and_b32 v{vT2}, 1, v{vT0}")
    a(f"v_cmp_eq_u32 vcc, 0, v{vT2}")
    a(f"v_mov_b32 v{vT3}, 0x3f803f80")
    a("s_nop 0")
    a(f"v_cndmask_b32 v{vCONSTV}, 0, v{vT3}, vcc")

    a.c("================ phase B")
    waits = [16, 12, 8, 8, 11, 11, 7]
    for i in range(7):
        sl = i % 4
        xa = vXA if sl < 2 else vXB
        wa = vWA if sl < 2 else vWB
        so = (sl & 1) * 32768
        a(f"s_waitcnt vmcnt({waits[i]}) lgkmcnt(0)")
        a("s_barrier")
        if i == 0: stamp(a, cfg, 1)
        if i in (1, 2, 3):
            issue_kv_chunk(a, (i + 3) % 4)
        if i == 3:
            issue_wq(a, [4, 5, 6])
        if i == 4:
            issue_wq(a, [0, 1, 2, 3])
        if i == 2:
            a(f"v_readfirstlane_b32 s{sTAG}, v{KB+4}")
            a.c("w_phi^T fragments")
            a(f"v_and_b32 v{vT0}, 15, v{vLANE}")
            a(f"v_lshrrev_b32 v{vT1}, 2, v{vT0}")
            a(f"v_and_b32 v{vT0}, 3, v{vT0}")
            a(f"v_and_b32 v{vT2}, 16, v{vLANE}")
            a(f"v_lshrrev_b32 v{vT2}, 2, v{vT2}")
            a(f"v_add_u32 v{vT0}, v{vT0}, v{vT2}")
            a(f"v_min_u32 v{vT0}, 6, v{vT0}")
            a(f"v_lshlrev_b32 v{vT0}, 3, v{vT0}")
            a(f"v_lshrrev_b32 v{vT2}, 5, v{vLANE}")
            a(f"v_lshlrev_b32 v{vT2}, 2, v{vT2}")
            a(f"v_add_u32 v{vT1}, v{vT1}, v{vT2}")
            a(f"v_mul_u32_u24 v{vT1}, 56, v{vT1}")
            a(f"v_add_u32 v{vT0}, v{vT0}, v{vT1}")
            a(f"s_lshr_b32 s{sT}, s{sWV}, 2")
            a(f"s_mul_i32 s{sT}, s{sT}, 1568")
            a(f"s_add_u32 s{sT}, s{sT}, {L_PHI}")
            a(f"v_add_u32 v{vT0}, s{sT}, v{vT0}")
            for s in range(2):
                for u in range(2):
                    a(f"ds_read_b64_tr_b16 v[{PF+4*s+2*u}:{PF+4*s+2*u+1}], v{vT0} offset:{(16*s+8*u)*56}")
            a("s_waitcnt lgkmcnt(0)")
            a(f"s_add_u32 s{sTAG}, s{sTAG}, 1")
            for d in range(8):
                a(f"v_mov_b32_dpp v{PF+d}, v{PF+d} row_shr:2 row_mask:0xa bank_mask:0x8")
            a(f"v_cmp_gt_u32 vcc, 32, v{vLANE}")
            a("s_nop 1")
            a(f"v_cndmask_b32 v{PF+6}, 0, v{PF+6}, vcc")
            a(f"v_cndmask_b32 v{PF+7}, 0, v{PF+7}, vcc")
        if i == 6:
            pass
        def reads(s):
            a(f"ds_read_b128 v[{XF+4*(4*i+s)}:{XF+4*(4*i+s)+3}], v{xa+s} offset:{so}")
            for sec in range(2):
                for u in range(2):
                    b = WF + 8*s + 4*sec + 2*u
                    a(f"ds_read_b64_tr_b16 v[{b}:{b+1}], v{wa} offset:{so + 16384 + sec*8192 + (16*s + 4*u)*128}")
        def mf(s):
            x = vr(XF + 4*(4*i+s), 4)
            first = (i == 0 and s == 0)
            a(f"v_mfma_f32_32x32x16_bf16 {vr(aK,16)}, {vr(WF+8*s,4)}, {x}, {'0' if first else vr(aK,16)}")
            a(f"v_mfma_f32_32x32x16_bf16 {vr(aV,16)}, {x}, {vr(WF+8*s+4,4)}, {'0' if first else vr(aV,16)}")
        reads(0); reads(1); reads(2)
        a("s_waitcnt lgkmcnt(10)")
        mf(0)
        reads(3)
        a("s_waitcnt lgkmcnt(10)")
        mf(1)
        a("s_waitcnt lgkmcnt(5)")
        mf(2)
        a("s_waitcnt lgkmcnt(0)")
        mf(3)
    stamp(a, cfg, 2)
    if cfg.stop == 'B':
        dump_acc(a, cfg, [aK, aV])
        return finish(a, cfg)

    a.c("================ phase C1")
    a("s_nop 10")
    for j in range(8):
        a(f"v_cvt_pk_bf16_f32 v{KB+j}, v{aK+2*j}, v{aK+2*j+1}")
    a("s_nop 1")
    a(f"v_mfma_f32_32x32x16_bf16 {vr(aK,16)}, {vr(PF,4)}, {vr(KB,4)}, 0")
    a(f"v_mfma_f32_32x32x16_bf16 {vr(aK,16)}, {vr(PF+4,4)}, {vr(KB+4,4)}, {vr(aK,16)}")
    a(f"s_mov_b32 s{sT2}, 0xf0000000")
    a(f"s_mov_b32 s{sT3}, 0xf0000000")
    for j in range(8):
        a(f"v_cvt_pk_bf16_f32 v{WF+j}, v{aV+2*j}, v{aV+2*j+1}")
    for j in range(8):
        a(f"v_cndmask_b32 v{WF+j}, v{WF+j}, v{vCONSTV}, s[{sT2}:{sT3}]")
    a(f"ds_write_b128 v{vVSW}, v[{WF}:{WF+3}]")
    a(f"ds_write_b128 v{vVSW}, v[{WF+4}:{WF+7}] offset:1024")
    softmax_prep(a, aK, cfg)
    exps(a, aK)
    def tree_sum(base, dst):
        a(f"v_add_f32 v{vT2}, v{base}, v{base+1}")
        a(f"v_add_f32 v{vT3}, v{base+2}, v{base+3}")
        a(f"v_add_f32 v{vT4}, v{base+4}, v{base+5}")
        a(f"v_add_f32 v{vT5}, v{base+6}, v{base+7}")
        a(f"v_add_f32 v{vT2}, v{vT2}, v{base+8}")
        a(f"v_add_f32 v{vT3}, v{vT3}, v{base+9}")
        a(f"v_add_f32 v{vT4}, v{vT4}, v{base+10}")
        a(f"v_add_f32 v{vT5}, v{vT5}, v{base+11}")
        a(f"v_add_f32 v{vT2}, v{vT2}, v{base+12}")
        a(f"v_add_f32 v{vT3}, v{vT3}, v{base+13}")
        a(f"v_add_f32 v{vT4}, v{vT4}, v{vT5}")
        a(f"v_add_f32 v{vT2}, v{vT2}, v{vT3}")
        a(f"v_add_f32 v{dst}, v{vT2}, v{vT4}")
    tree_sum(EPL, vT0)
    tree_sum(EMI, vT1)
    a("s_nop 1")
    a(f"v_permlane32_swap_b32 v{vT0}, v{vT1}")
    a("s_nop 1")
    a(f"v_add_f32 v{vT0}, v{vT0}, v{vT1}")
    a(f"v_rcp_f32 v{vT0}, v{vT0}")
    a("s_nop 0")
    a(f"v_mov_b32 v{vT1}, v{vT0}")
    a("s_nop 1")
    a(f"v_permlane32_swap_b32 v{vT0}, v{vT1}")
    a("s_nop 1")
    for r in range(14):
        a(f"v_mul_f32 v{EPL+r}, v{EPL+r}, v{vT0}")
        a(f"v_mul_f32 v{EMI+r}, v{EMI+r}, v{vT1}")
    PP, PM = WF + 8, WF + 16
    for j in range(7):
        a(f"v_cvt_pk_bf16_f32 v{PP+j}, v{EPL+2*j}, v{EPL+2*j+1}")
        a(f"v_cvt_pk_bf16_f32 v{PM+j}, v{EMI+2*j}, v{EMI+2*j+1}")
    a(f"v_mov_b32 v{PP+7}, 0")
    a(f"v_mov_b32 v{PM+7}, 0")
    for sg, base in ((0, PP), (1, PM)):
        for i4 in range(4):
            a(f"v_xor_b32 v{vT2 + (i4 & 1)}, {((8*sg + 2*i4) << 3)}, v{vPHW}")
            a(f"ds_write_b64 v{vT2 + (i4 & 1)}, v[{base+2*i4}:{base+2*i4+1}]")
    a("s_waitcnt lgkmcnt(0)")
    a("s_barrier")
    stamp(a, cfg, 3)
    if cfg.stop == 'C1':
        return finish(a, cfg, dump_lds=(0, 65536))
    a.c("================ phase C2")
    a(f"s_cmp_ge_u32 s{sWV}, 4")
    a("s_cbranch_scc1 L_c2_hi")
    a(f"v_and_b32 v{vT0}, 15, v{vLANE}")
    a(f"v_lshrrev_b32 v{vT1}, 2, v{vT0}")
    a(f"v_and_b32 v{vT0}, 3, v{vT0}")
    a(f"v_and_b32 v{vT2}, 16, v{vLANE}")
    a(f"v_lshrrev_b32 v{vT2}, 2, v{vT2}")
    a(f"v_add_u32 v{vT0}, v{vT0}, v{vT2}")
    a(f"s_and_b32 s{sT}, s{sWV}, 1")
    a(f"s_lshl_b32 s{sT}, s{sT}, 3")
    a(f"v_add_u32 v{vT0}, s{sT}, v{vT0}")
    a(f"v_lshrrev_b32 v{vT2}, 5, v{vLANE}")
    a(f"v_lshlrev_b32 v{vT2}, 2, v{vT2}")
    a(f"v_add_u32 v{vT1}, v{vT1}, v{vT2}")
    a(f"v_and_b32 v{vT2}, 5, v{vT1}")
    a(f"v_and_b32 v{vT3}, 2, v{vT1}")
    a(f"v_lshlrev_b32 v{vT3}, 2, v{vT3}")
    a(f"v_or_b32 v{vT2}, v{vT2}, v{vT3}")
    a(f"v_xor_b32 v{vT2}, v{vT2}, v{vT0}")
    a(f"v_lshlrev_b32 v{vT2}, 3, v{vT2}")
    a(f"v_lshlrev_b32 v{vT3}, 7, v{vT1}")
    a(f"v_add_u32 v{vT2}, v{vT2}, v{vT3}")
    a(f"s_lshr_b32 s{sT}, s{sWV}, 1")
    a(f"s_lshl_b32 s{sU}, s{sT}, 14")
    a(f"s_add_u32 s{sU}, s{sU}, {L_PHIS}")
    a(f"v_add_u32 v{vT2}, s{sU}, v{vT2}")
    a(f"v_xor_b32 v{vT3}, 16, v{vT2}")
    a(f"v_add_u32 v{vT3}, 1024, v{vT3}")
    a(f"s_lshl_b32 s{sT}, s{sT}, 13")
    a(f"s_add_u32 s{sT}, s{sT}, {L_VS}")
    a(f"v_lshlrev_b32 v{vT4}, 4, v{vLANE}")
    a(f"v_add_u32 v{vT4}, s{sT}, v{vT4}")
    BF = 96
    def c2_reads(k):
        t4, s = k >> 1, k & 1
        a(f"ds_read_b64_tr_b16 v[{WF+4*k}:{WF+4*k+1}], v{vT2} offset:{t4*4096 + s*2048}")
        a(f"ds_read_b64_tr_b16 v[{WF+4*k+2}:{WF+4*k+3}], v{vT3} offset:{t4*4096 + s*2048}")
        a(f"ds_read_b128 v[{BF+4*k}:{BF+4*k+3}], v{vT4} offset:{k*1024}")
    for k in range(5): c2_reads(k)
    for k in range(8):
        rem = min(5, 8 - k) - 1
        a(f"s_waitcnt lgkmcnt({3*rem})")
        a(f"v_mfma_f32_32x32x16_bf16 {vr(aK,16)}, {vr(WF+4*k,4)}, {vr(BF+4*k,4)}, {'0' if k == 0 else vr(aK,16)}")
        if k + 5 < 8: c2_reads(k + 5)
    a(f"s_lshl_b32 s{sT}, s{sHP}, 4")
    a(f"s_add_u32 s{sT}, s{sT}, s{sTB}")
    a(f"s_lshl_b32 s{sT}, s{sT}, 3")
    a(f"s_lshl_b32 s{sU}, s{sWV}, 1")
    a(f"s_add_u32 s{sT}, s{sT}, s{sU}")
    a(f"s_lshl_b32 s{sT}, s{sT}, 10")
    a(f"s_add_u32 s{sT}, s{sT}, {WS_P}")
    a(f"v_lshlrev_b32 v{vT4}, 4, v{vLANE}")
    a("s_nop 4")
    for j in range(8):
        a(f"v_cvt_pk_bf16_f32 v{KB+j}, v{aK+2*j}, v{aK+2*j+1}")
    a(f"buffer_store_dwordx4 v[{KB}:{KB+3}], v{vT4}, s[{SWS}:{SWS+3}], s{sT} offen sc0 sc1")
    a(f"buffer_store_dwordx4 v[{KB+4}:{KB+7}], v{vT4}, s[{SWS}:{SWS+3}], s{sT} offen offset:1024 sc0 sc1")
    a("s_waitcnt vmcnt(2)")
    a("s_branch L_c2_done")
    a.label("L_c2_hi")
    a("s_waitcnt vmcnt(0)")
    a.label("L_c2_done")
    a("s_barrier")
    stamp(a, cfg, 4)
    if cfg.stop == 'C2':
        a("s_waitcnt vmcnt(0)")
        return finish(a, cfg)

    a.c("================ wo prefetch 1")
    a(f"s_mov_b32 s{sT4}, s{sWV}")
    issue_wo(a, [(8*c, c >= 7) for c in range(12)])
    a.c("================ q GEMM")
    vG2 = 11
    a(f"v_mov_b32 v{vG}, 0")
    a(f"v_mov_b32 v{vG2}, 0")
    def q_reads(k):
        i, s = k >> 2, k & 3
        b = WF + 8 * (k & 3)
        for u in range(2):
            a(f"ds_read_b64_tr_b16 v[{b+2*u}:{b+2*u+1}], v{vWQ} offset:{8192*i + (16*s + 4*u)*128}")
        a(f"ds_read_b128 v[{b+4}:{b+7}], v{vGA} offset:{i*128 + s*32}")
    for k in range(4): q_reads(k)
    for k in range(28):
        rem = min(4, 28 - k) - 1
        b = WF + 8 * (k & 3)
        a(f"s_waitcnt lgkmcnt({3*rem})")
        a(f"v_mfma_f32_32x32x16_bf16 {vr(aQ,16)}, {vr(b,4)}, {vr(XF+4*k,4)}, {'0' if k == 0 else vr(aQ,16)}")
        for d in range(4):
            a(f"v_dot2c_f32_bf16 v{vG if d % 2 == 0 else vG2}, v{XF+4*k+d}, v{b+4+d}")
        if k + 4 < 28: q_reads(k + 4)
        if k == cfg.flagstep:
            a(f"s_cmp_ge_u32 s{sWV}, 4")
            a("s_cbranch_scc1 L_noflag1")
            a(f"s_lshl_b32 s{sT}, s{sHP}, 8")
            a(f"s_lshl_b32 s{sU}, s{sTB}, 4")
            a(f"s_add_u32 s{sT}, s{sT}, s{sU}")
            a(f"s_lshl_b32 s{sU}, s{sWV}, 2")
            a(f"s_add_u32 s{sT}, s{sT}, s{sU}")
            a(f"s_add_u32 s{sT}, s{sT}, {WS_FLAG1}")
            a(f"v_mov_b32 v{vT0}, 0")
            a(f"v_mov_b32 v{vT1}, s{sTAG}")
            a("s_waitcnt vmcnt(12)")
            a("s_mov_b64 exec, 1")
            a(f"buffer_store_dword v{vT1}, v{vT0}, s[{SWS}:{SWS+3}], s{sT} offen sc0 sc1")
            a("s_mov_b64 exec, -1")
            a.label("L_noflag1")
    stamp(a, cfg, 5)
    a.c("================ q features")
    a("s_nop 7")
    a(f"v_add_f32 v{vG}, v{vG}, v{vG2}")
    a(f"v_mov_b32 v{vG2}, v{vG}")
    a("s_nop 1")
    a(f"v_permlane32_swap_b32 v{vG}, v{vG2}")
    for j in range(8):
        a(f"v_cvt_pk_bf16_f32 v{KB+j}, v{aQ+2*j}, v{aQ+2*j+1}")
    a("s_nop 1")
    a(f"v_mfma_f32_32x32x16_bf16 {vr(aK,16)}, {vr(PF,4)}, {vr(KB,4)}, 0")
    a(f"v_mfma_f32_32x32x16_bf16 {vr(aK,16)}, {vr(PF+4,4)}, {vr(KB+4,4)}, {vr(aK,16)}")
    a(f"s_cmp_eq_u32 s{sBR}, 0")
    a(f"s_cselect_b32 s{sGS}, s{sNLOG2E}, s{sLOG2E}")
    a(f"v_add_f32 v{vG}, v{vG}, v{vG2}")
    a(f"v_mul_f32 v{vG}, s{sGS}, v{vG}")
    a(f"v_exp_f32 v{vG}, v{vG}")
    a("s_nop 0")
    a(f"v_add_f32 v{vG}, 1.0, v{vG}")
    a(f"v_rcp_f32 v{vG}, v{vG}")
    a("s_nop 5")
    softmax_prep(a, aK, cfg)
    exps(a, aK)
    for j in range(7):
        a(f"v_cvt_pk_bf16_f32 v{EP+j}, v{EPL+2*j}, v{EPL+2*j+1}")
        a(f"v_cvt_pk_bf16_f32 v{EM+j}, v{EMI+2*j}, v{EMI+2*j+1}")
    a(f"v_mov_b32 v{EP+7}, 0")
    a(f"v_mov_b32 v{EM+7}, 0")
    stamp(a, cfg, 6)
    a.c("================ sync 1")
    def poll(lab, soff_code):
        a(f"s_cmp_lg_u32 s{sWV}, 0")
        a(f"s_cbranch_scc1 {lab}_done")
        soff_code()
        a(f"v_lshlrev_b32 v{vT0}, 2, v{vLANE}")
        a(f"s_mov_b32 s{sSPIN}, 0")
        a.label(lab)
        a(f"buffer_load_dword v{vT1}, v{vT0}, s[{SWS}:{SWS+3}], s{sT} offen sc0 sc1")
        a("s_waitcnt vmcnt(0)")
        a(f"v_cmp_ne_u32 vcc, s{sTAG}, v{vT1}")
        a(f"s_add_u32 s{sSPIN}, s{sSPIN}, 1")
        a(f"s_cmp_eq_u64 vcc, 0")
        a("s_cbranch_scc1 " + lab + "_done")
        a(f"s_cmp_lt_u32 s{sSPIN}, {cfg.maxspin}")
        if cfg.sleep: a(f"s_sleep {cfg.sleep}")
        a(f"s_cbranch_scc1 {lab}")
        a.label(lab + "_done")
    def soff1():
        a(f"s_lshl_b32 s{sT}, s{sHP}, 8")
        a(f"s_add_u32 s{sT}, s{sT}, {WS_FLAG1}")
    poll("L_poll1", soff1)
    a("s_barrier")
    stamp(a, cfg, 7)
    a.c("================ phase 2")
    PL = XF
    a(f"s_lshl_b32 s{sT}, s{sHP}, 17")
    a(f"s_lshl_b32 s{sU}, s{sWV}, 10")
    a(f"s_add_u32 s{sT}, s{sT}, s{sU}")
    a(f"s_add_u32 s{sT}, s{sT}, {WS_P}")
    a(f"v_lshlrev_b32 v{vT0}, 4, v{vLANE}")
    for t in range(16):
        a(f"buffer_load_dwordx4 v[{PL+4*t}:{PL+4*t+3}], v{vT0}, s[{SWS}:{SWS+3}], s{sT} offen sc0 sc1")
        if t < 15: a(f"s_add_u32 s{sT}, s{sT}, 8192")
    a(f"s_mov_b32 s{sT4}, s{sWV}")
    issue_wo(a, [(96 + 8*c, True) for c in range(2)])
    ACC = 16
    for j in range(8): a(f"v_mov_b32 v{ACC+j}, 0")
    for t in range(16):
        a(f"s_waitcnt vmcnt({2 + 15 - t})")
        for d in range(4):
            a(f"v_dot2c_f32_bf16 v{ACC+2*d}, s{sC_LO}, v{PL+4*t+d}")
            a(f"v_dot2c_f32_bf16 v{ACC+2*d+1}, s{sC_HI}, v{PL+4*t+d}")
    a(f"s_mov_b32 s{sT2}, 0x88000000")
    a(f"s_mov_b32 s{sT3}, 0x88000000")
    a(f"v_mov_b32 v{vT1}, 0x3f803f80")
    a(f"s_lshl_b32 s{sU}, s{sWV}, 10")
    a(f"s_add_u32 s{sU}, s{sU}, {L_KVF}")
    a(f"v_add_u32 v{vT2}, s{sU}, v{vT0}")
    for d in range(4):
        a(f"v_cvt_pk_bf16_f32 v{24+d}, v{ACC+2*d}, v{ACC+2*d+1}")
    for d in range(4):
        a(f"v_cndmask_b32 v{24+d}, v{24+d}, v{vT1}, s[{sT2}:{sT3}]")
    a(f"ds_write_b128 v{vT2}, v[24:27]")
    a("s_waitcnt lgkmcnt(0)")
    a("s_barrier")
    a(f"s_lshr_b32 s{sU}, s{sWV}, 2")
    a(f"s_lshl_b32 s{sU}, s{sU}, 12")
    a(f"s_add_u32 s{sU}, s{sU}, {L_KVF}")
    a(f"v_add_u32 v{vT2}, s{sU}, v{vT0}")
    for k in range(4):
        a(f"ds_read_b128 v[{WF+4*k}:{WF+4*k+3}], v{vT2} offset:{k*1024}")
    DP, DM = 16, 32
    a("s_waitcnt lgkmcnt(2)")
    a(f"v_mfma_f32_32x32x16_bf16 {vr(DP,16)}, {vr(WF,4)}, {vr(EP,4)}, 0")
    a(f"v_mfma_f32_32x32x16_bf16 {vr(DP,16)}, {vr(WF+4,4)}, {vr(EP+4,4)}, {vr(DP,16)}")
    a("s_waitcnt lgkmcnt(0)")
    a(f"v_mfma_f32_32x32x16_bf16 {vr(DM,16)}, {vr(WF+8,4)}, {vr(EM,4)}, 0")
    a(f"v_mfma_f32_32x32x16_bf16 {vr(DM,16)}, {vr(WF+12,4)}, {vr(EM+4,4)}, {vr(DM,16)}")
    a(f"s_and_b32 s{sU}, s{sWV}, 3")
    a(f"s_lshl_b32 s{sT}, s{sTB}, 2")
    a(f"s_add_u32 s{sT}, s{sT}, s{sU}")
    a(f"s_lshl_b32 s{sT}, s{sT}, 1")
    a(f"s_add_u32 s{sT}, s{sT}, s{sBR}")
    a(f"s_lshl_b32 s{sT}, s{sT}, 4")
    a(f"s_lshl_b32 s{sU}, s{sH2}, 1")
    a(f"s_add_u32 s{sT}, s{sT}, s{sU}")
    a(f"s_lshr_b32 s{sU}, s{sWV}, 2")
    a(f"s_add_u32 s{sT}, s{sT}, s{sU}")
    a(f"s_lshl_b32 s{sT}, s{sT}, 11")
    a(f"s_add_u32 s{sT}, s{sT}, {WS_O}")
    a("s_nop 1")
    a(f"v_mul_f32 v{vT1}, v{DP+14}, v{DM+15}")
    a(f"v_mul_f32 v{vT2}, v{DP+15}, v{DM+15}")
    a(f"v_fma_f32 v{vT1}, v{DM+14}, v{DP+15}, v{vT1}")
    a(f"v_mov_b32 v{vT3}, 0x358637bd")
    a(f"v_fma_f32 v{vT1}, v{vT2}, v{vT3}, v{vT1}")
    a(f"v_rcp_f32 v{vT1}, v{vT1}")
    a("s_nop 0")
    a(f"v_mul_f32 v{vT1}, v{vT1}, v{vG}")
    a(f"v_mul_f32 v{vT2}, v{DM+15}, v{vT1}")
    a(f"v_mul_f32 v{vT3}, v{DP+15}, v{vT1}")
    for r in range(14):
        a(f"v_mul_f32 v{DP+r}, v{DP+r}, v{vT2}")
    for r in range(14):
        a(f"v_fma_f32 v{DP+r}, v{DM+r}, v{vT3}, v{DP+r}")
    for j in range(7):
        a(f"v_cvt_pk_bf16_f32 v{KB+j}, v{DP+2*j}, v{DP+2*j+1}")
    a(f"v_mov_b32 v{KB+7}, 0")
    a(f"buffer_store_dwordx4 v[{KB}:{KB+3}], v{vT0}, s[{SWS}:{SWS+3}], s{sT} offen sc0 sc1")
    a(f"buffer_store_dwordx4 v[{KB+4}:{KB+7}], v{vT0}, s[{SWS}:{SWS+3}], s{sT} offen offset:1024 sc0 sc1")
    a(f"s_lshr_b32 s{sU}, s{sWV}, 1")
    a(f"s_and_b32 s{sU}, s{sU}, 1")
    a(f"s_lshl_b32 s{sT}, s{sTB}, 1")
    a(f"s_add_u32 s{sT}, s{sT}, s{sU}")
    a(f"s_lshl_b32 s{sT}, s{sT}, 4")
    a(f"s_add_u32 s{sT}, s{sT}, s{sHP}")
    a(f"s_lshl_b32 s{sT}, s{sT}, 4")
    a(f"s_lshr_b32 s{sU}, s{sWV}, 2")
    a(f"s_lshl_b32 s{sU}, s{sU}, 3")
    a(f"s_add_u32 s{sT}, s{sT}, s{sU}")
    a(f"s_and_b32 s{sU}, s{sWV}, 1")
    a(f"s_lshl_b32 s{sU}, s{sU}, 2")
    a(f"s_add_u32 s{sT}, s{sT}, s{sU}")
    a(f"s_add_u32 s{sT}, s{sT}, {WS_FLAG2}")
    a(f"v_mov_b32 v{vT1}, 0")
    a(f"v_mov_b32 v{vT2}, s{sTAG}")
    a("s_waitcnt vmcnt(0)")
    a("s_mov_b64 exec, 1")
    a(f"buffer_store_dword v{vT2}, v{vT1}, s[{SWS}:{SWS+3}], s{sT} offen sc0 sc1")
    a("s_mov_b64 exec, -1")
    stamp(a, cfg, 8)
    if cfg.stop == 'P2':
        return finish(a, cfg)
    a(f"s_cmp_ge_u32 s{sJ}, 28")
    a("s_cbranch_scc1 L_fin")
    a("s_barrier")
    a.c("================ phase 3")
    AD = 176
    OF = 192
    WR = 48
    ACC3 = 16
    a(f"v_lshrrev_b32 v{vT0}, 4, v{vLANE}")
    a(f"v_and_b32 v{vT1}, 1, v{vT0}")
    a(f"v_lshrrev_b32 v{vT2}, 1, v{vT0}")
    a(f"v_and_b32 v{vT3}, 15, v{vLANE}")
    a(f"v_lshrrev_b32 v{vT4}, 2, v{vT3}")
    a(f"v_and_b32 v{vT3}, 3, v{vT3}")
    a(f"v_lshlrev_b32 v{vT5}, 4, v{vT2}")
    a(f"v_lshl_add_u32 v{vT5}, v{vT1}, 2, v{vT5}")
    a(f"v_add_u32 v{vT5}, v{vT5}, v{vT4}")
    a(f"v_lshl_add_u32 v{AD}, v{vT1}, 2, v{vT4}")
    a(f"v_add_u32 v{AD}, 8, v{AD}")
    a(f"v_lshl_add_u32 v{AD+1}, v{vT1}, 1, v{vT4}")
    a(f"v_add_u32 v{AD+2}, 24, v{AD+1}")
    a(f"v_add_u32 v{AD+3}, 18, v{AD+1}")
    a(f"v_cmp_lt_u32 vcc, 1, v{vT4}")
    a("s_nop 1")
    a(f"v_cndmask_b32 v{AD+2}, v{AD+2}, v{AD+3}, vcc")
    a(f"v_cmp_eq_u32 vcc, 1, v{vT2}")
    a("s_nop 1")
    a(f"v_cndmask_b32 v{AD+4}, v{AD}, v{AD+2}, vcc")
    a(f"s_lshr_b32 s{sU}, s{sWV}, 2")
    a(f"s_mul_i32 s{sU}, s{sU}, {448*128}")
    a(f"v_lshrrev_b32 v{vT0}, 1, v{vT3}")
    a(f"v_lshlrev_b32 v{vT0}, 4, v{vT0}")
    a(f"v_and_b32 v{vT1}, 1, v{vT3}")
    a(f"v_lshl_add_u32 v{vT0}, v{vT1}, 3, v{vT0}")
    a(f"v_add_u32 v{vT0}, s{sU}, v{vT0}")
    for u, dreg in ((0, vT5), (1, AD+4)):
        a(f"v_lshrrev_b32 v{vT1}, 1, v{dreg}")
        a(f"v_and_b32 v{vT1}, 3, v{vT1}")
        a(f"v_lshlrev_b32 v{vT1}, 5, v{vT1}")
        a(f"v_lshl_add_u32 v{vT2}, v{dreg}, 7, v{vT0}")
        a(f"v_add_u32 v{vT2}, v{vT2}, v{vT1}")
        for ct in range(4):
            a(f"v_xor_b32 v{AD+4*u+ct if not (u == 1 and ct == 0) else vT3}, {32*ct}, v{vT2}")
        if u == 1:
            a(f"v_mov_b32 v{AD+4}, v{vT3}")
    def wo_reads(hd):
        b = WR + 16 * (hd & 7)
        for ct in range(4):
            cc = ct ^ 2 if (hd & 1) else ct
            for u in range(2):
                a(f"ds_read_b64_tr_b16 v[{b+4*ct+2*u}:{b+4*ct+2*u+1}], v{AD+4*u+cc} offset:{hd*3584}")
    for hd in range(8): wo_reads(hd)
    def soff2():
        a(f"s_lshl_b32 s{sT}, s{sT64}, 8")
        a(f"s_add_u32 s{sT}, s{sT}, {WS_FLAG2}")
    poll("L_poll2", soff2)
    a("s_barrier")
    stamp(a, cfg, 9)
    a(f"v_lshrrev_b32 v{vT0}, 4, v{vLANE}")
    a(f"v_and_b32 v{vT1}, 1, v{vT0}")
    a(f"v_lshrrev_b32 v{vT2}, 1, v{vT0}")
    a(f"v_lshlrev_b32 v{vT2}, 10, v{vT2}")
    a(f"v_lshl_add_u32 v{vT2}, v{vT1}, 9, v{vT2}")
    a(f"v_and_b32 v{vT3}, 15, v{vLANE}")
    a(f"v_lshl_add_u32 v{vT2}, v{vT3}, 4, v{vT2}")
    a(f"s_and_b32 s{sU}, s{sWV}, 1")
    a(f"s_lshl_b32 s{sU}, s{sU}, 8")
    a(f"v_add_u32 v{vT2}, s{sU}, v{vT2}")
    a(f"s_lshl_b32 s{sT}, s{sT64}, 1")
    a(f"s_lshr_b32 s{sU}, s{sWV}, 1")
    a(f"s_and_b32 s{sU}, s{sU}, 1")
    a(f"s_add_u32 s{sT}, s{sT}, s{sU}")
    a(f"s_lshl_b32 s{sT}, s{sT}, 1")
    a(f"s_lshr_b32 s{sU}, s{sWV}, 2")
    a(f"s_add_u32 s{sT}, s{sT}, s{sU}")
    a(f"s_lshl_b32 s{sT}, s{sT}, 15")
    a(f"s_add_u32 s{sT}, s{sT}, {WS_O}")
    for hd in range(16):
        a(f"buffer_load_dwordx4 v[{OF+4*hd}:{OF+4*hd+3}], v{vT2}, s[{SWS}:{SWS+3}], s{sT} offen offset:{(hd&1)*2048} sc0 sc1")
        if hd & 1 and hd < 15: a(f"s_add_u32 s{sT}, s{sT}, 4096")
    for hd in range(16):
        b = WR + 16 * (hd & 7)
        if hd == 0:
            a(f"s_waitcnt vmcnt(15) lgkmcnt(0)")
        elif hd < 8:
            a(f"s_waitcnt vmcnt({15-hd})")
        else:
            a(f"s_waitcnt vmcnt({15-hd}) lgkmcnt({min(8 * (15 - hd), 15)})")
        for ct in range(4):
            a(f"v_mfma_f32_16x16x32_bf16 {vr(ACC3+4*ct,4)}, {vr(b+4*ct,4)}, {vr(OF+4*hd,4)}, {'0' if hd == 0 else vr(ACC3+4*ct,4)}")
        if hd + 8 < 16: wo_reads(hd + 8)
    stamp(a, cfg, 10)
    a(f"s_lshr_b32 s{sU}, s{sWV}, 2")
    a(f"s_and_b32 s{sT}, s{sWV}, 3")
    a(f"s_lshl_b32 s{sT}, s{sT}, 1")
    a(f"s_add_u32 s{sT2}, s{sT}, s{sU}")
    a(f"s_xor_b32 s{sT3}, s{sT2}, 1")
    a(f"s_lshl_b32 s{sT2}, s{sT2}, 11")
    a(f"s_lshl_b32 s{sT3}, s{sT3}, 11")
    a(f"s_add_u32 s{sT2}, s{sT2}, {L_RED}")
    a(f"s_add_u32 s{sT3}, s{sT3}, {L_RED}")
    a(f"v_lshlrev_b32 v{vT0}, 4, v{vLANE}")
    a(f"v_add_u32 v{vT1}, s{sT2}, v{vT0}")
    a(f"v_add_u32 v{vT2}, s{sT3}, v{vT0}")
    a(f"s_cmp_eq_u32 s{sU}, 0")
    a("s_cbranch_scc0 L_red_b")
    a("s_nop 4")
    a(f"ds_write_b128 v{vT1}, v[{ACC3+8}:{ACC3+11}]")
    a(f"ds_write_b128 v{vT1}, v[{ACC3+12}:{ACC3+15}] offset:1024")
    a("s_branch L_red_c")
    a.label("L_red_b")
    a("s_nop 4")
    a(f"ds_write_b128 v{vT1}, v[{ACC3}:{ACC3+3}]")
    a(f"ds_write_b128 v{vT1}, v[{ACC3+4}:{ACC3+7}] offset:1024")
    for j in range(8):
        a(f"v_mov_b32 v{ACC3+j}, v{ACC3+8+j}")
    a.label("L_red_c")
    a("s_waitcnt lgkmcnt(0)")
    a("s_barrier")
    a(f"ds_read_b128 v[32:35], v{vT2}")
    a(f"ds_read_b128 v[36:39], v{vT2} offset:1024")
    a(f"s_lshl_b32 s{sT}, s{sT64}, 6")
    a(f"s_and_b32 s{sT2}, s{sWV}, 3")
    a(f"s_lshl_b32 s{sT2}, s{sT2}, 4")
    a(f"s_add_u32 s{sT}, s{sT}, s{sT2}")
    a(f"s_mul_i32 s{sT}, s{sT}, 896")
    a(f"s_add_u32 s{sT}, s{sT}, s{sCT}")
    a(f"s_lshl_b32 s{sU}, s{sU}, 6")
    a(f"s_add_u32 s{sT}, s{sT}, s{sU}")
    a(f"v_and_b32 v{vT0}, 15, v{vLANE}")
    a(f"v_mul_u32_u24 v{vT0}, 896, v{vT0}")
    a(f"v_lshrrev_b32 v{vT1}, 4, v{vLANE}")
    a(f"v_lshl_add_u32 v{vT0}, v{vT1}, 3, v{vT0}")
    a("s_waitcnt lgkmcnt(0)")
    for j in range(8):
        a(f"v_add_f32 v{ACC3+j}, v{ACC3+j}, v{32+j}")
    for j in range(4):
        a(f"v_cvt_pk_bf16_f32 v{40+j}, v{ACC3+2*j}, v{ACC3+2*j+1}")
    a(f"buffer_store_dwordx2 v[40:41], v{vT0}, s[{SOUT}:{SOUT+3}], s{sT} offen")
    a(f"buffer_store_dwordx2 v[42:43], v{vT0}, s[{SOUT}:{SOUT+3}], s{sT} offen offset:32")
    a(f"s_or_b32 s{sT}, s2, s{sWV}")
    a(f"s_cmp_lg_u32 s{sT}, 0")
    a("s_cbranch_scc1 L_fin")
    a(f"v_mov_b32 v{vT1}, {WS_EPOCH}")
    a(f"v_mov_b32 v{vT2}, s{sTAG}")
    a("s_mov_b64 exec, 1")
    a(f"buffer_store_dword v{vT2}, v{vT1}, s[{SWS}:{SWS+3}], 0 offen sc0 sc1")
    a("s_mov_b64 exec, -1")
    a.label("L_fin")
    return finish(a, cfg)

def dump_acc(a, cfg, accs):
    n = len(accs)
    a(f"s_lshl_b32 s{sT}, s2, 3")
    a(f"s_add_u32 s{sT}, s{sT}, s{sWV}")
    a(f"s_mul_i32 s{sT}, s{sT}, {4096*n}")
    a(f"s_add_u32 s{sT}, s{sT}, {WS_DBG}")
    a(f"v_lshlrev_b32 v{vT0}, 2, v{vLANE}")
    a("s_nop 15")
    for k, base in enumerate(accs):
        for r in range(16):
            a(f"buffer_store_dword v{base+r}, v{vT0}, s[{SWS}:{SWS+3}], s{sT} offen offset:{r*256}")
        a(f"s_add_u32 s{sT}, s{sT}, 4096")

def finish(a, cfg, dump_lds=None):
    if dump_lds:
        lo, hi = dump_lds
        n = (hi - lo)
        a("s_waitcnt vmcnt(0) lgkmcnt(0)")
        a("s_barrier")
        a(f"s_cmp_ge_u32 s2, 64")
        a("s_cbranch_scc1 L_nodump")
        a(f"s_mul_i32 s{sT}, s2, {n}")
        a(f"s_add_u32 s{sT}, s{sT}, {WS_DBG}")
        a(f"v_lshlrev_b32 v{vT0}, 4, v0")
        for k in range(n // 8192):
            a(f"v_add_u32 v{vT1}, {lo + k*8192}, v{vT0}")
            a(f"ds_read_b128 v[{WF}:{WF+3}], v{vT1}")
            a("s_waitcnt lgkmcnt(0)")
            a(f"v_add_u32 v{vT1}, {k*8192}, v{vT0}")
            a(f"buffer_store_dwordx4 v[{WF}:{WF+3}], v{vT1}, s[{SWS}:{SWS+3}], s{sT} offen")
            a("s_nop 1")
        a.label("L_nodump")
    if cfg.prof:
        a(f"s_cmp_eq_u32 s{sWV}, {cfg.profwave}")
        a("s_cbranch_scc0 L_noprof")
        a("s_waitcnt vmcnt(0)")
        stamp(a, cfg, 11)
        a(f"s_lshl_b32 s{sT}, s2, 6")
        a(f"s_add_u32 s{sT}, s{sT}, {WS_PROF}")
        a(f"v_mov_b32 v{vT0}, 0")
        a(f"s_mov_b64 exec, 1")
        for k in range(12):
            a(f"v_mov_b32 v8, s{sPROF+k}")
            a(f"buffer_store_dword v8, v{vT0}, s[{SWS}:{SWS+3}], s{sT} offen offset:{4*k}")
        a("s_mov_b64 exec, -1")
        a.label("L_noprof")
    a.label("L_exit")
    a("s_endpgm")
    a.label("L_end")
    return a

def wrap(a, cfg):
    hdr = open("gated_mix__linear_kernel_hedgehog__linear_kernel_hedgehog__prompt.s.ref").read().split("\n")
    out = []
    for ln in hdr:
        if ln.startswith("; @launch"):
            out.append("; @launch grid=(256,1,1) block=(512,1,1) lds=163840")
        elif ln.startswith(";"):
            out.append(ln)
        else:
            break
    out.append('.amdgcn_target "amdgcn-amd-amdhsa--gfx950"')
    out.append(".text")
    out.append(f".globl {KNAME}")
    out.append(".p2align 8")
    out.append(f".type {KNAME},@function")
    body = a.text()
    out.append(".set CODE_KB_LEFT, ((L_end - L_pc) / 1024) - 1")
    out.append(body)
    out.append('.section .rodata,"a"')
    out.append(".p2align 6")
    out.append(f".amdhsa_kernel {KNAME}")
    out.append("  .amdhsa_next_free_vgpr 256")
    out.append("  .amdhsa_next_free_sgpr 102")
    out.append("  .amdhsa_accum_offset 256")
    out.append("  .amdhsa_group_segment_fixed_size 0")
    out.append("  .amdhsa_kernarg_size 96")
    out.append("  .amdhsa_user_sgpr_count 2")
    out.append("  .amdhsa_user_sgpr_kernarg_segment_ptr 1")
    out.append("  .amdhsa_system_sgpr_workgroup_id_x 1")
    out.append(".end_amdhsa_kernel")
    return "\n".join(out) + "\n"

if __name__ == "__main__":
    ap = argparse.ArgumentParser()
    ap.add_argument("--stop", default="")
    ap.add_argument("--prof", action="store_true")
    ap.add_argument("--norot", action="store_true")
    ap.add_argument("--profwave", type=int, default=0)
    ap.add_argument("--flagstep", type=int, default=10)
    ap.add_argument("--maxspin", type=int, default=200000)
    ap.add_argument("--sleep", type=int, default=0)
    ap.add_argument("-o", default="k.s")
    cfg = ap.parse_args()
    a = gen(cfg)
    txt = wrap(a, cfg)
    open(cfg.o, "w").write(txt)
    import hazard
    errs = hazard.check(a.text())
    for e in errs: print("HAZARD", e)
    print("wrote", cfg.o, len(txt), "bytes;", len(errs), "hazards")
```

```python
import sys, argparse
KNAME = "gated_mix__linear_kernel_hedgehog__linear_kernel_hedgehog__prompt_kernel"

class A:
    def __init__(self): self.l = []
    def __call__(self, s): self.l.append("    " + s)
    def label(self, s): self.l.append(s + ":")
    def c(self, s): self.l.append("    ; " + s)
    def text(self): return "\n".join(self.l) + "\n"

def vr(b, n=1): return f"v{b}" if n == 1 else f"v[{b}:{b+n-1}]"

XBYTES = 2048 * 448 * 2
WBYTES = 448 * 1344 * 2
WOBYTES = 448 * 448 * 2
PHIBYTES = 16 * 28 * 28 * 2
WS_FLAG1 = 0x0
WS_FLAG2 = 0x1000
WS_EPOCH = 0x4000
WS_P = 0x100000
WS_O = 0x300000
WS_PROF = 0x780000
WS_SIZE = 0x800000
S0, S1, S2, S3 = 0, 32768, 65536, 98304
LM = 131072
L_WQ = S3
L_PHI = 155648
L_GATE = 159744
L_PHIS = S0
L_VS = S1
L_KVF = LM
L_RED = LM + 8192
LOG2E = 0x3FB8AA3B

s_AX, s_AW, s_APHI, s_AWO, s_BX, s_BW, s_BPHI, s_BWO = 4, 6, 8, 10, 12, 14, 16, 18
s_GATE, s_OUT, s_DBG, s_WS = 20, 22, 24, 26
SX, SW, SWS, SOA, SOB, SOUT, SMI = 28, 32, 36, 40, 44, 48, 52
sWV, sTB, sBR, sH2, sHP, sC0, sC = 56, 57, 58, 59, 60, 61, 62
sXbase, sWbase, sT, sU, sLdsX, sLdsW = 63, 64, 65, 66, 67, 68
sTAG, sJ, sLOG2E, sNLOG2E = 69, 70, 71, 72
sM0, sM1 = 74, 75
sT2, sT3, sT4 = 76, 77, 78
sC_LO, sC_HI = 79, 80
sT64, sCT = 81, 82
sSPIN = 83
sEX0 = 84
sGS = 86
sROT = 87
sA, sB = 90, 91
sROT3 = 92
sWOB = 93
sX8 = 89
sR2 = 88

vLANE = 1
aK, aV, aQ = 16, 32, 32
WF = 48
PF = 80
KB = 88
EPL, EMI = 96, 110
EP, EM = 124, 132
vG, vGA, vWQ, vPHW = 140, 141, 142, 143
XF = 144
vXA, vXB = 96, 100
vWA, vWB = 104, 105
vDX0, vDX1, vDW = 106, 107, 108
vVSW, vCONSTV, vDO = 2, 3, 4
vT0, vT1, vT2, vT3, vT4, vT5 = 5, 6, 7, 8, 9, 10
vG2 = 11
vEPOCH = 12
vJUNK = 13
vPROF = 15
vC2A0, vC2A1, vC2B = 128, 129, 130
vL16 = 14

STAMPS = []
def stamp(a, cfg, name):
    if cfg.prof:
        if name not in STAMPS: STAMPS.append(name)
        idx = STAMPS.index(name)
        a(f"s_memtime s[100:101]")
        a("s_waitcnt lgkmcnt(0)")
        a(f"v_writelane_b32 v{vPROF}, s100, {idx}")

def srd(a, d, base, size):
    a(f"s_mov_b32 s{d}, s{base}")
    a(f"s_mov_b32 s{d+1}, s{base+1}")
    a(f"s_mov_b32 s{d+2}, {size}")
    a(f"s_mov_b32 s{d+3}, 0x00020000")

def kv_ops(a, slot):
    base = slot * 32768
    def x0():
        a(f"s_lshl_b32 s{sT}, s{sC}, 7")
        a(f"s_add_u32 s{sT}, s{sT}, s{sXbase}")
        a(f"s_add_u32 m0, s{sLdsX}, {base}")
        a(f"s_mul_i32 s{sU}, s{sC}, {64*2688}")
        a(f"buffer_load_dwordx4 v{vDX0}, s[{SX}:{SX+3}], s{sT} offen lds")
    def x1():
        a(f"s_add_u32 m0, s{sLdsX}, {base+1024}")
        a(f"s_add_u32 s{sU}, s{sU}, s{sWbase}")
        a(f"buffer_load_dwordx4 v{vDX1}, s[{SX}:{SX+3}], s{sT} offen lds")
    def wk():
        a(f"s_mov_b64 exec, s[{sM0}:{sM1}]")
        a(f"s_add_u32 m0, s{sLdsW}, {base+16384}")
        a(f"s_add_u32 s{sT}, s{sU}, 896")
        a(f"buffer_load_dwordx4 v{vDW}, s[{SW}:{SW+3}], s{sT} offen lds")
        a(f"s_mov_b64 exec, -1")
    def wv():
        a(f"s_mov_b64 exec, s[{sM0}:{sM1}]")
        a(f"s_add_u32 m0, s{sLdsW}, {base+16384+8192}")
        a(f"s_add_u32 s{sT}, s{sU}, 1792")
        a(f"buffer_load_dwordx4 v{vDW}, s[{SW}:{SW+3}], s{sT} offen lds")
        a(f"s_mov_b64 exec, -1")
        a(f"s_add_u32 s{sC}, s{sC}, 1")
        a(f"s_cmp_eq_u32 s{sC}, 7")
        a(f"s_cselect_b32 s{sC}, 0, s{sC}")
    return [x0, x1, wk, wv]

def issue_kv_chunk(a, slot):
    for f in kv_ops(a, slot): f()

def wq_op(a, pos):
    def f():
        a(f"s_add_u32 s{sT}, s{sC0}, {pos}")
        a(f"s_cmp_ge_u32 s{sT}, 7")
        a(f"s_cselect_b32 s{sU}, 7, 0")
        a(f"s_sub_u32 s{sT}, s{sT}, s{sU}")
        a(f"s_mul_i32 s{sT}, s{sT}, {64*2688}")
        a(f"s_add_u32 m0, s{sLdsW}, {L_WQ + 8192*pos}")
        a(f"s_add_u32 s{sT}, s{sT}, s{sWbase}")
        a(f"s_mov_b64 exec, s[{sM0}:{sM1}]")
        a(f"buffer_load_dwordx4 v{vDW}, s[{SW}:{SW+3}], s{sT} offen lds")
        a(f"s_mov_b64 exec, -1")
    return f

def wo_op(a, c):
    a(f"s_add_u32 m0, s{sLdsW}, {c*8192}")
    a(f"s_add_u32 s{sT}, s{sWOB}, {(c % 7) * 8 * 8 * 896}")
    S = SOA if c < 7 else SOB
    a(f"buffer_load_dwordx4 v{vDO}, s[{S}:{S+3}], s{sT} offen lds")

def issue_wo(a, groups):
    for (c, isB) in groups:
        a(f"s_add_u32 s{sT}, s{sT4}, {c}")
        a(f"s_lshl_b32 m0, s{sT}, 10")
        if isB:
            a(f"s_sub_u32 s{sT}, s{sT}, 56")
        a(f"s_mul_i32 s{sT}, s{sT}, {8*896}")
        a(f"s_add_u32 s{sT}, s{sT}, s{sCT}")
        S = SOB if isB else SOA
        a(f"buffer_load_dwordx4 v{vDO}, s[{S}:{S+3}], s{sT} offen lds")

def issue_misc(a, tag):
    a(f"v_lshlrev_b32 v{vJUNK}, 4, v{vLANE}")
    a(f"s_cmp_ge_u32 s{sWV}, 4")
    a(f"s_cbranch_scc1 L_gate_dma{tag}")
    a(f"s_cmp_eq_u32 s{sBR}, 0")
    a(f"s_cselect_b32 s{SMI}, s{s_APHI}, s{s_BPHI}")
    a(f"s_cselect_b32 s{SMI+1}, s{s_APHI+1}, s{s_BPHI+1}")
    a(f"s_mov_b32 s{SMI+2}, {PHIBYTES}")
    a(f"s_mov_b32 s{SMI+3}, 0x00020000")
    a(f"s_mul_i32 s{sT}, s{sH2}, {2*1568}")
    a(f"s_lshl_b32 s{sU}, s{sWV}, 10")
    a(f"s_add_u32 s{sT}, s{sT}, s{sU}")
    a(f"s_add_u32 m0, s{sU}, {L_PHI}")
    a("s_nop 0")
    a(f"buffer_load_dwordx4 v{vJUNK}, s[{SMI}:{SMI+3}], s{sT} offen lds")
    a(f"s_branch L_gate_done{tag}")
    a.label(f"L_gate_dma{tag}")
    a(f"s_mov_b32 s{SMI}, s{s_GATE}")
    a(f"s_mov_b32 s{SMI+1}, s{s_GATE+1}")
    a(f"s_mov_b32 s{SMI+2}, 896")
    a(f"s_mov_b32 s{SMI+3}, 0x00020000")
    a(f"s_and_b32 s{sU}, s{sWV}, 1")
    a(f"s_mul_i32 s{sU}, s{sU}, 896")
    a(f"s_add_u32 m0, s{sU}, {L_GATE}")
    a(f"s_mov_b32 exec_lo, -1")
    a(f"s_mov_b32 exec_hi, 0x00ffffff")
    a(f"buffer_load_dwordx4 v{vJUNK}, s[{SMI}:{SMI+3}], 0 offen lds")
    a(f"s_mov_b64 exec, -1")
    a.label(f"L_gate_done{tag}")

def issue_epoch(a, cfg):
    if cfg.notouch:
        a(f"v_mov_b32 v{vJUNK}, {WS_EPOCH}")
    else:
        a(f"v_lshlrev_b32 v{vJUNK}, 21, v{vLANE}")
        a(f"v_min_u32 v{vJUNK}, 0x600000, v{vJUNK}")
        a(f"v_add_u32 v{vJUNK}, {WS_EPOCH}, v{vJUNK}")
    a(f"buffer_load_dword v{vEPOCH}, v{vJUNK}, s[{SWS}:{SWS+3}], 0 offen sc0 sc1")

def issue_touch(a, cfg):
    a(f"v_lshlrev_b32 v{vT3}, 17, v{vLANE}")
    a(f"s_and_b32 s{sT}, s{sWV}, 3")
    a(f"s_cmp_eq_u32 s{sT}, 1")
    a(f"s_cselect_b32 s{SMI}, s{s_AWO}, s{s_OUT}")
    a(f"s_cselect_b32 s{SMI+1}, s{s_AWO+1}, s{s_OUT+1}")
    a(f"s_cmp_eq_u32 s{sT}, 2")
    a(f"s_cselect_b32 s{SMI}, s{s_BWO}, s{SMI}")
    a(f"s_cselect_b32 s{SMI+1}, s{s_BWO+1}, s{SMI+1}")
    a(f"s_mov_b32 s{SMI+2}, {WOBYTES}")
    a(f"s_mov_b32 s{SMI+3}, 0x00020000")
    a(f"buffer_load_dword v{vJUNK}, v{vT3}, s[{SMI}:{SMI+3}], 0 offen")

def split_parts(fn, n):
    t = A(); fn(t)
    groups = []; cur = []; depth = 0
    for ln in t.l:
        cur.append(ln)
        if "saveexec" in ln: depth = 1
        if depth and "s_mov_b64 exec, -1" in ln: depth = 0
        if depth == 0 and not ln.strip().startswith("v_cmp") and "s_nop" not in ln:
            groups.append(cur); cur = []
    if cur: groups.append(cur)
    parts = [[] for _ in range(n)]
    for k, g in enumerate(groups): parts[min(n - 1, k * n // len(groups))] += g
    return parts

def softmax_prep(a, P):
    a(f"v_max3_f32 v{vT2}, v{P}, v{P+1}, v{P+2}")
    a(f"v_max3_f32 v{vT3}, v{P+3}, v{P+4}, v{P+5}")
    a(f"v_max3_f32 v{vT4}, v{P+6}, v{P+7}, v{P+8}")
    a(f"v_max3_f32 v{vT5}, v{P+9}, v{P+10}, v{P+11}")
    a(f"v_max3_f32 v{vT2}, v{P+12}, v{P+13}, v{vT2}")
    a(f"v_max3_f32 v{vT3}, v{vT3}, v{vT4}, v{vT5}")
    a(f"v_max_f32 v{vT0}, v{vT2}, v{vT3}")
    a(f"v_min3_f32 v{vT2}, v{P}, v{P+1}, v{P+2}")
    a(f"v_min3_f32 v{vT3}, v{P+3}, v{P+4}, v{P+5}")
    a(f"v_min3_f32 v{vT4}, v{P+6}, v{P+7}, v{P+8}")
    a(f"v_min3_f32 v{vT5}, v{P+9}, v{P+10}, v{P+11}")
    a(f"v_min3_f32 v{vT2}, v{P+12}, v{P+13}, v{vT2}")
    a(f"v_min3_f32 v{vT3}, v{vT3}, v{vT4}, v{vT5}")
    a(f"v_min_f32 v{vT1}, v{vT2}, v{vT3}")
    a(f"v_mul_f32 v{vT0}, s{sNLOG2E}, v{vT0}")
    a(f"v_mul_f32 v{vT1}, s{sLOG2E}, v{vT1}")
    a("s_nop 1")
    a(f"v_permlane32_swap_b32 v{vT0}, v{vT1}")
    a("s_nop 1")
    a(f"v_min_f32 v{vT0}, v{vT0}, v{vT1}")
    a(f"v_mov_b32 v{vT1}, v{vT0}")
    a("s_nop 1")
    a(f"v_permlane32_swap_b32 v{vT0}, v{vT1}")
    a("s_nop 1")

def exps(a, P):
    for r in range(14):
        a(f"v_fma_f32 v{EPL+r}, v{P+r}, s{sLOG2E}, v{vT0}")
        a(f"v_fma_f32 v{EMI+r}, v{P+r}, s{sNLOG2E}, v{vT1}")
    for r in range(14):
        a(f"v_exp_f32 v{EPL+r}, v{EPL+r}")
        a(f"v_exp_f32 v{EMI+r}, v{EMI+r}")

def setup_early(a, cfg):
    Z = WF
    for i in range(4): a(f"v_mov_b32 v{Z+i}, 0")
    a(f"v_and_b32 v{vT0}, 127, v0")
    a(f"v_lshrrev_b32 v{vT1}, 7, v0")
    a(f"v_lshlrev_b32 v{vT1}, 15, v{vT1}")
    a(f"v_lshlrev_b32 v{vT2}, 7, v{vT0}")
    a(f"v_add_u32 v{vT1}, v{vT1}, v{vT2}")
    a(f"v_and_b32 v{vT3}, 2, v{vT0}")
    a(f"v_lshlrev_b32 v{vT3}, 5, v{vT3}")
    a(f"v_xor_b32 v{vT3}, 112, v{vT3}")
    a(f"v_add_u32 v{vT1}, v{vT1}, v{vT3}")
    a(f"ds_write_b128 v{vT1}, v[{Z}:{Z+3}] offset:16384")
    a(f"v_lshlrev_b32 v{vT2}, 7, v0")
    a(f"v_add_u32 v{vT2}, v{vT2}, v{vT3}")
    a(f"v_add_u32 v{vT2}, {LM}, v{vT2}")
    a(f"v_cmp_gt_u32 vcc, 192, v0")
    a(f"s_and_saveexec_b64 s[{sEX0}:{sEX0+1}], vcc")
    a("s_cbranch_execz L_pad_done")
    a(f"ds_write_b128 v{vT2}, v[{Z}:{Z+3}]")
    a.label("L_pad_done")
    a(f"s_mov_b64 exec, -1")
    a(f"v_and_b32 v{vT0}, 31, v{vLANE}")
    a(f"v_lshrrev_b32 v{vT1}, 5, v{vLANE}")
    a(f"v_lshrrev_b32 v{vT2}, 1, v{vT0}")
    a(f"v_and_b32 v{vT2}, 7, v{vT2}")
    a(f"v_xor_b32 v{vT2}, v{vT2}, v{vT1}")
    a(f"v_lshlrev_b32 v{vT2}, 4, v{vT2}")
    a(f"s_and_b32 s{sA}, s{sWV}, 3")
    a(f"s_lshl_b32 s{sA}, s{sA}, 12")
    a(f"v_lshlrev_b32 v{vT3}, 7, v{vT0}")
    a(f"v_add_u32 v{vT3}, s{sA}, v{vT3}")
    a(f"v_add_u32 v{vT3}, v{vT3}, v{vT2}")
    for s in range(4):
        a(f"v_xor_b32 v{vXA+s}, {32*s}, v{vT3}")
        a(f"v_add_u32 v{vXB+s}, 65536, v{vXA+s}")
    a(f"v_and_b32 v{vT2}, 15, v{vLANE}")
    a(f"v_lshrrev_b32 v{vT3}, 2, v{vT2}")
    a(f"v_and_b32 v{vT2}, 3, v{vT2}")
    a(f"v_lshlrev_b32 v{vT2}, 3, v{vT2}")
    a(f"v_and_b32 v{vT4}, 16, v{vLANE}")
    a(f"v_lshlrev_b32 v{vT4}, 1, v{vT4}")
    a(f"v_add_u32 v{vT2}, v{vT2}, v{vT4}")
    a(f"s_lshr_b32 s{sA}, s{sWV}, 2")
    a(f"s_mul_i32 s{sB}, s{sA}, 56")
    a(f"v_add_u32 v{vT2}, s{sB}, v{vT2}")
    a(f"v_and_b32 v{vT4}, 2, v{vT3}")
    a(f"v_lshlrev_b32 v{vT4}, 5, v{vT4}")
    a(f"v_xor_b32 v{vT2}, v{vT2}, v{vT4}")
    a(f"v_lshlrev_b32 v{vT4}, 3, v{vT1}")
    a(f"v_add_u32 v{vT4}, v{vT4}, v{vT3}")
    a(f"v_lshlrev_b32 v{vT4}, 7, v{vT4}")
    a(f"v_add_u32 v{vWA}, v{vT4}, v{vT2}")
    a(f"v_add_u32 v{vWB}, 65536, v{vWA}")
    a(f"v_add_u32 v{vWQ}, {L_WQ}, v{vWA}")

def setup_late(a, cfg):
    a(f"s_min_u32 s{sA}, s{sJ}, 27")
    a(f"s_mul_i32 s{sB}, s{sA}, 37")
    a(f"s_lshr_b32 s{sB}, s{sB}, 8")
    a(f"s_lshl_b32 s{sT64}, s{sX8}, 2")
    a(f"s_add_u32 s{sT64}, s{sT64}, s{sB}")
    a(f"s_mul_i32 s{sB}, s{sB}, 7")
    a(f"s_sub_u32 s{sCT}, s{sA}, s{sB}")
    a(f"s_lshl_b32 s{sCT}, s{sCT}, 7")
    a(f"s_mov_b32 s{sLOG2E}, {LOG2E:#x}")
    a(f"s_mov_b32 s{sNLOG2E}, {LOG2E | 0x80000000:#x}")
    a(f"s_mov_b32 s{sC_LO}, 0x00003f80")
    a(f"s_mov_b32 s{sC_HI}, 0x3f800000")
    a(f"v_lshlrev_b32 v{vL16}, 4, v{vLANE}")
    a(f"s_min_u32 s{sA}, s{sJ}, 27")
    a(f"s_mul_i32 s{sA}, s{sA}, 37")
    a(f"s_lshr_b32 s{sA}, s{sA}, 8")
    a(f"s_lshl_b32 s{sROT}, s{sA}, 1")
    a(f"s_mul_i32 s{sWOB}, s{sWV}, {8*896}")
    a(f"s_add_u32 s{sWOB}, s{sWOB}, s{sCT}")
    a(f"s_lshr_b32 s{sR2}, s{sCT}, 7")
    a(f"v_and_b32 v{vT0}, 31, v{vLANE}")
    a(f"v_lshrrev_b32 v{vT1}, 5, v{vLANE}")
    a(f"s_lshr_b32 s{sA}, s{sWV}, 2")
    a(f"s_lshl_b32 s{sB}, s{sC0}, 7")
    a(f"s_add_u32 s{sB}, s{sB}, {L_GATE}")
    a(f"v_lshlrev_b32 v{vGA}, 4, v{vT1}")
    a(f"v_add_u32 v{vGA}, s{sB}, v{vGA}")
    a(f"v_and_b32 v{vT2}, 5, v{vT0}")
    a(f"v_and_b32 v{vT3}, 2, v{vT0}")
    a(f"v_lshlrev_b32 v{vT3}, 2, v{vT3}")
    a(f"v_or_b32 v{vT2}, v{vT2}, v{vT3}")
    a(f"v_and_b32 v{vT3}, 8, v{vT0}")
    a(f"v_lshrrev_b32 v{vT3}, 2, v{vT3}")
    a(f"v_or_b32 v{vT2}, v{vT2}, v{vT3}")
    a(f"v_xor_b32 v{vT2}, v{vT2}, v{vT1}")
    a(f"v_lshlrev_b32 v{vT2}, 3, v{vT2}")
    a(f"v_lshlrev_b32 v{vT3}, 7, v{vT0}")
    a(f"v_add_u32 v{vT2}, v{vT2}, v{vT3}")
    a(f"s_and_b32 s{sB}, s{sWV}, 3")
    a(f"s_lshl_b32 s{sB}, s{sB}, 12")
    a(f"s_lshl_b32 s{sA}, s{sA}, 14")
    a(f"s_add_u32 s{sB}, s{sB}, s{sA}")
    a(f"s_add_u32 s{sB}, s{sB}, {L_PHIS}")
    a(f"v_add_u32 v{vPHW}, s{sB}, v{vT2}")
    a(f"v_add_u32 v{vT2}, 2, v{vT0}")
    a(f"v_subrev_u32 v{vT3}, 2, v{vT0}")
    a(f"v_mov_b32 v{vT4}, v{vT0}")
    a(f"v_cmp_lt_u32 vcc, 25, v{vT0}")
    a("s_nop 1")
    a(f"v_cndmask_b32 v{vT4}, v{vT4}, v{vT2}, vcc")
    a(f"v_cmp_lt_u32 vcc, 27, v{vT0}")
    a("s_nop 1")
    a(f"v_cndmask_b32 v{vT4}, v{vT4}, v{vT3}, vcc")
    a(f"v_cmp_lt_u32 vcc, 29, v{vT0}")
    a("s_nop 1")
    a(f"v_cndmask_b32 v{vT4}, v{vT4}, v{vT0}, vcc")
    a(f"v_lshlrev_b32 v{vT2}, 5, v{vT1}")
    a(f"v_add_u32 v{vT4}, v{vT4}, v{vT2}")
    a(f"v_lshlrev_b32 v{vT4}, 4, v{vT4}")
    a(f"s_lshl_b32 s{sB}, s{sWV}, 11")
    a(f"s_add_u32 s{sB}, s{sB}, {L_VS}")
    a(f"v_add_u32 v{vVSW}, s{sB}, v{vT4}")
    a(f"v_and_b32 v{vT2}, 1, v{vT0}")
    a(f"v_cmp_eq_u32 vcc, 0, v{vT2}")
    a(f"v_mov_b32 v{vT3}, 0x3f803f80")
    a("s_nop 0")
    a(f"v_cndmask_b32 v{vCONSTV}, 0, v{vT3}, vcc")
    a(f"v_lshrrev_b32 v{vT0}, 3, v{vLANE}")
    a(f"v_and_b32 v{vT1}, 7, v{vLANE}")
    a(f"v_and_b32 v{vT2}, 2, v{vT0}")
    a(f"v_lshlrev_b32 v{vT3}, 1, v{vT2}")
    a(f"v_xor_b32 v{vT3}, v{vT1}, v{vT3}")
    a(f"v_lshlrev_b32 v{vT3}, 4, v{vT3}")
    a(f"v_mul_u32_u24 v{vT4}, 896, v{vT0}")
    a(f"v_add_u32 v{vDO}, v{vT4}, v{vT3}")

def pf_frags(a):
    a.c("w_phi^T fragments")
    a(f"v_and_b32 v{vT0}, 15, v{vLANE}")
    a(f"v_lshrrev_b32 v{vT1}, 2, v{vT0}")
    a(f"v_and_b32 v{vT0}, 3, v{vT0}")
    a(f"v_and_b32 v{vT2}, 16, v{vLANE}")
    a(f"v_lshrrev_b32 v{vT2}, 2, v{vT2}")
    a(f"v_add_u32 v{vT0}, v{vT0}, v{vT2}")
    a(f"v_min_u32 v{vT0}, 6, v{vT0}")
    a(f"v_lshlrev_b32 v{vT0}, 3, v{vT0}")
    a(f"v_lshrrev_b32 v{vT2}, 5, v{vLANE}")
    a(f"v_lshlrev_b32 v{vT2}, 2, v{vT2}")
    a(f"v_add_u32 v{vT1}, v{vT1}, v{vT2}")
    a(f"v_mul_u32_u24 v{vT1}, 56, v{vT1}")
    a(f"v_add_u32 v{vT0}, v{vT0}, v{vT1}")
    a(f"s_lshr_b32 s{sT}, s{sWV}, 2")
    a(f"s_mul_i32 s{sT}, s{sT}, 1568")
    a(f"s_add_u32 s{sT}, s{sT}, {L_PHI}")
    a(f"v_add_u32 v{vT0}, s{sT}, v{vT0}")
    for s in range(2):
        for u in range(2):
            a(f"ds_read_b64_tr_b16 v[{PF+4*s+2*u}:{PF+4*s+2*u+1}], v{vT0} offset:{(16*s+8*u)*56}")

def pf_fix(a):
    for d in range(8):
        a(f"v_mov_b32_dpp v{PF+d}, v{PF+d} row_shr:2 row_mask:0xa bank_mask:0x8")
    a(f"v_cmp_gt_u32 vcc, 32, v{vLANE}")
    a("s_nop 1")
    a(f"v_cndmask_b32 v{PF+6}, 0, v{PF+6}, vcc")
    a(f"v_cndmask_b32 v{PF+7}, 0, v{PF+7}, vcc")

def phase_b(a, cfg):
    waits = [4, 5, 5, 5, 5, 4, 4]
    late = split_parts(lambda t: (setup_late(t, cfg), c2_addresses(t)), 4)
    for i in range(7):
        sl = i % 4
        xa = vXA if sl < 2 else vXB
        wa = vWA if sl < 2 else vWB
        so = (sl & 1) * 32768
        a(f"s_waitcnt vmcnt({waits[i]}) lgkmcnt(0)")
        a("s_barrier")
        stamp(a, cfg, f"chunk{i}")
        ops = []
        if i <= 4: ops += kv_ops(a, (i + 2) % 4)
        if i == 0: ops.append(lambda: issue_misc(a, "_a"))
        if i == 2: ops.append(lambda: issue_epoch(a, cfg))
        if i == 5: ops += [wq_op(a, 4), wq_op(a, 5), wq_op(a, 6), wq_op(a, 0)]
        if i == 6: ops += [wq_op(a, 1), wq_op(a, 2), wq_op(a, 3)]
        def reads(s):
            a(f"ds_read_b128 v[{XF+4*(4*i+s)}:{XF+4*(4*i+s)+3}], v{xa+s} offset:{so}")
            for sec in range(2):
                for u in range(2):
                    b = WF + 8*s + 4*sec + 2*u
                    a(f"ds_read_b64_tr_b16 v[{b}:{b+1}], v{wa} offset:{so + 16384 + sec*8192 + (16*s + 4*u)*128}")
        def mf(s):
            x = vr(XF + 4*(4*i+s), 4)
            first = (i == 0 and s == 0)
            a(f"v_mfma_f32_32x32x16_bf16 {vr(aK,16)}, {vr(WF+8*s,4)}, {x}, {'0' if first else vr(aK,16)}")
            a(f"v_mfma_f32_32x32x16_bf16 {vr(aV,16)}, {x}, {vr(WF+8*s+4,4)}, {'0' if first else vr(aV,16)}")
        def pop():
            if ops:
                f = ops.pop(0)
                if f: f()
        if i == 4: pf_frags(a)
        reads(0); reads(1); reads(2)
        a("s_waitcnt lgkmcnt(10)")
        mf(0)
        reads(3)
        pop()
        a("s_waitcnt lgkmcnt(10)")
        mf(1)
        pop()
        a("s_waitcnt lgkmcnt(5)")
        mf(2)
        pop()
        if i < 4: a.l += late[i]
        a("s_waitcnt lgkmcnt(0)")
        mf(3)
        while ops: pop()
        if i == 4: pf_fix(a)

def c2_addresses(a):
    a(f"v_and_b32 v{vT0}, 15, v{vLANE}")
    a(f"v_lshrrev_b32 v{vT1}, 2, v{vT0}")
    a(f"v_and_b32 v{vT0}, 3, v{vT0}")
    a(f"v_and_b32 v{vT2}, 16, v{vLANE}")
    a(f"v_lshrrev_b32 v{vT2}, 2, v{vT2}")
    a(f"v_add_u32 v{vT0}, v{vT0}, v{vT2}")
    a(f"s_and_b32 s{sA}, s{sWV}, 1")
    a(f"s_lshl_b32 s{sA}, s{sA}, 3")
    a(f"v_add_u32 v{vT0}, s{sA}, v{vT0}")
    a(f"v_lshrrev_b32 v{vT2}, 5, v{vLANE}")
    a(f"v_lshlrev_b32 v{vT2}, 2, v{vT2}")
    a(f"v_add_u32 v{vT1}, v{vT1}, v{vT2}")
    a(f"v_and_b32 v{vT2}, 5, v{vT1}")
    a(f"v_and_b32 v{vT3}, 2, v{vT1}")
    a(f"v_lshlrev_b32 v{vT3}, 2, v{vT3}")
    a(f"v_or_b32 v{vT2}, v{vT2}, v{vT3}")
    a(f"v_xor_b32 v{vT2}, v{vT2}, v{vT0}")
    a(f"v_lshlrev_b32 v{vT2}, 3, v{vT2}")
    a(f"v_lshlrev_b32 v{vT3}, 7, v{vT1}")
    a(f"v_add_u32 v{vT2}, v{vT2}, v{vT3}")
    a(f"s_lshr_b32 s{sA}, s{sWV}, 1")
    a(f"s_and_b32 s{sA}, s{sA}, 1")
    a(f"s_lshl_b32 s{sB}, s{sA}, 14")
    a(f"s_add_u32 s{sB}, s{sB}, {L_PHIS}")
    a(f"v_add_u32 v{vC2A0}, s{sB}, v{vT2}")
    a(f"v_xor_b32 v{vC2A1}, 16, v{vC2A0}")
    a(f"v_add_u32 v{vC2A1}, 1024, v{vC2A1}")
    a(f"s_lshl_b32 s{sA}, s{sA}, 13")
    a(f"s_add_u32 s{sA}, s{sA}, {L_VS}")
    a(f"v_lshlrev_b32 v{vT4}, 4, v{vLANE}")
    a(f"v_add_u32 v{vC2B}, s{sA}, v{vT4}")

def gen(cfg):
    a = A()
    a.label(KNAME)
    a("s_cmp_ge_u32 s2, 256")
    a("s_cbranch_scc1 L_exit")
    if cfg.prof:
        a("s_memrealtime s[98:99]")
        a("s_waitcnt lgkmcnt(0)")
        a(f"v_mov_b32 v{vPROF}, 0")
        a(f"v_writelane_b32 v{vPROF}, s98, 63")
        stamp(a, cfg, "start")
    a("s_load_dwordx16 s[4:19], s[0:1], 0")
    a("s_load_dwordx8 s[20:27], s[0:1], 64")
    a(f"v_lshrrev_b32 v{vT0}, 6, v0")
    a(f"v_and_b32 v{vLANE}, 63, v0")
    a(f"s_lshr_b32 s{sJ}, s2, 3")
    a(f"v_readfirstlane_b32 s{sWV}, v{vT0}")
    if not cfg.nopf:
        a(f"s_getpc_b64 s[{sT2}:{sT3}]")
        a.label("L_pc")
        a(f"s_and_b32 s{sT}, s{sJ}, 1")
        a(f"s_lshl_b32 s{sT}, s{sT}, 3")
        a(f"s_add_u32 s{sT}, s{sT}, s{sWV}")
        a(f"s_min_u32 s{sT}, s{sT}, CODE_KB_LEFT")
        a(f"s_lshl_b32 s{sT}, s{sT}, 10")
        a(f"v_lshlrev_b32 v{vT1}, 4, v{vLANE}")
        a(f"v_add_u32 v{vT1}, s{sT}, v{vT1}")
        a(f"global_load_dwordx4 v[{KB}:{KB+3}], v{vT1}, s[{sT2}:{sT3}]")
    else:
        a.label("L_pc")
    a(f"s_and_b32 s{sX8}, s2, 7")
    if cfg.map == 0:
        a(f"s_mov_b32 s{sH2}, s{sX8}")
        a(f"s_and_b32 s{sTB}, s{sJ}, 15")
        a(f"s_lshr_b32 s{sBR}, s{sJ}, 4")
        a(f"s_mul_i32 s{sC0}, s{sBR}, 3")
        a(f"s_add_u32 s{sC0}, s{sC0}, s{sTB}")
    else:
        a(f"s_and_b32 s{sT}, s{sX8}, 1")
        a(f"s_lshl_b32 s{sT}, s{sT}, 3")
        a(f"s_and_b32 s{sC0}, s{sJ}, 7")
        a(f"s_add_u32 s{sTB}, s{sT}, s{sC0}")
        a(f"s_lshr_b32 s{sBR}, s{sX8}, 2")
        a(f"s_and_b32 s{sH2}, s{sX8}, 2")
        a(f"s_lshl_b32 s{sH2}, s{sH2}, 1")
        a(f"s_lshr_b32 s{sT}, s{sJ}, 3")
        a(f"s_add_u32 s{sH2}, s{sH2}, s{sT}")
        if cfg.rotv == 0:
            a(f"s_lshl_b32 s{sT}, s{sT}, 1")
            a(f"s_add_u32 s{sC0}, s{sC0}, s{sT}")
        elif cfg.rotv == 1:
            a(f"s_add_u32 s{sC0}, s{sC0}, s{sT}")
            a(f"s_and_b32 s{sC0}, s{sC0}, 1")
            a(f"s_mul_i32 s{sC0}, s{sC0}, 3")
        elif cfg.rotv == 2:
            a(f"s_add_u32 s{sC0}, s{sC0}, s{sT}")
            a(f"s_and_b32 s{sC0}, s{sC0}, 3")
            a(f"s_lshl_b32 s{sC0}, s{sC0}, 1")
        elif cfg.rotv == 3:
            a(f"s_add_u32 s{sC0}, s{sC0}, s{sT}")
            a(f"s_mul_i32 s{sT}, s{sC0}, 86")
            a(f"s_lshr_b32 s{sT}, s{sT}, 8")
            a(f"s_mul_i32 s{sT}, s{sT}, 3")
            a(f"s_sub_u32 s{sC0}, s{sC0}, s{sT}")
            a(f"s_mul_i32 s{sC0}, s{sC0}, 5")
            a(f"s_lshr_b32 s{sC0}, s{sC0}, 1")
    a(f"s_lshl_b32 s{sHP}, s{sBR}, 3")
    a(f"s_add_u32 s{sHP}, s{sHP}, s{sH2}")
    for _ in range(2):
        a(f"s_cmp_ge_u32 s{sC0}, 7")
        a(f"s_cselect_b32 s{sT}, 7, 0")
        a(f"s_sub_u32 s{sC0}, s{sC0}, s{sT}")
    if cfg.norot:
        a(f"s_mov_b32 s{sC0}, 0")
    a(f"s_mov_b32 s{sC}, s{sC0}")
    a(f"s_mov_b32 s{sM0}, 0xf7f77f7f")
    a(f"s_mov_b32 s{sM1}, 0xf7f77f7f")
    a(f"s_lshl_b32 s{sT}, s{sTB}, 7")
    a(f"s_lshl_b32 s{sU}, s{sWV}, 4")
    a(f"s_add_u32 s{sT}, s{sT}, s{sU}")
    a(f"s_mul_i32 s{sXbase}, s{sT}, 896")
    a(f"s_mul_i32 s{sWbase}, s{sWV}, {8*2688}")
    a(f"s_mul_i32 s{sT}, s{sH2}, 112")
    a(f"s_add_u32 s{sWbase}, s{sWbase}, s{sT}")
    a(f"s_lshl_b32 s{sLdsX}, s{sWV}, 11")
    a(f"s_lshl_b32 s{sLdsW}, s{sWV}, 10")
    a(f"v_lshrrev_b32 v{vT0}, 3, v{vLANE}")
    a(f"v_and_b32 v{vT1}, 7, v{vLANE}")
    a(f"v_lshrrev_b32 v{vT2}, 1, v{vT0}")
    a(f"v_xor_b32 v{vT3}, v{vT1}, v{vT2}")
    a(f"v_lshlrev_b32 v{vT3}, 4, v{vT3}")
    a(f"v_mul_u32_u24 v{vT4}, 896, v{vT0}")
    a(f"v_add_u32 v{vDX0}, v{vT4}, v{vT3}")
    a(f"v_xor_b32 v{vT3}, 64, v{vT3}")
    a(f"v_add_u32 v{vDX1}, v{vT4}, v{vT3}")
    a(f"v_add_u32 v{vDX1}, {8*896}, v{vDX1}")
    a(f"v_and_b32 v{vT3}, 1, v{vT2}")
    a(f"v_lshlrev_b32 v{vT3}, 2, v{vT3}")
    a(f"v_xor_b32 v{vT3}, v{vT1}, v{vT3}")
    a(f"v_lshlrev_b32 v{vT3}, 4, v{vT3}")
    a(f"v_mul_u32_u24 v{vT4}, 2688, v{vT0}")
    a(f"v_add_u32 v{vDW}, v{vT4}, v{vT3}")
    a("s_waitcnt lgkmcnt(0)")
    stamp(a, cfg, "kernarg")
    srd(a, SX, s_AX, XBYTES)
    a(f"s_cmp_eq_u32 s{sBR}, 0")
    a(f"s_cselect_b32 s{SW}, s{s_AW}, s{s_BW}")
    a(f"s_cselect_b32 s{SW+1}, s{s_AW+1}, s{s_BW+1}")
    a(f"s_mov_b32 s{SW+2}, {WBYTES}")
    a(f"s_mov_b32 s{SW+3}, 0x00020000")
    issue_kv_chunk(a, 0)
    a("s_barrier")
    early = split_parts(lambda t: setup_early(t, cfg), 4)
    k = 0
    for f in kv_ops(a, 1):
        f()
        a.l += early[k]
        k += 1
    srd(a, SWS, s_WS, WS_SIZE)
    srd(a, SOUT, s_OUT, XBYTES)
    srd(a, SOA, s_AWO, WOBYTES)
    srd(a, SOB, s_BWO, WOBYTES)
    stamp(a, cfg, "c1iss")
    phase_b(a, cfg)
    stamp(a, cfg, "Bend")

    a.c("================ phase C1")
    a("s_nop 10")
    for j in range(8):
        a(f"v_cvt_pk_bf16_f32 v{KB+j}, v{aK+2*j}, v{aK+2*j+1}")
    a("s_nop 1")
    a(f"v_mfma_f32_32x32x16_bf16 {vr(aK,16)}, {vr(PF,4)}, {vr(KB,4)}, 0")
    a(f"v_mfma_f32_32x32x16_bf16 {vr(aK,16)}, {vr(PF+4,4)}, {vr(KB+4,4)}, {vr(aK,16)}")
    a(f"s_mov_b32 s{sT2}, 0xf0000000")
    a(f"s_mov_b32 s{sT3}, 0xf0000000")
    for j in range(8):
        a(f"v_cvt_pk_bf16_f32 v{WF+j}, v{aV+2*j}, v{aV+2*j+1}")
    for j in range(8):
        a(f"v_cndmask_b32 v{WF+j}, v{WF+j}, v{vCONSTV}, s[{sT2}:{sT3}]")
    a(f"ds_write_b128 v{vVSW}, v[{WF}:{WF+3}]")
    a(f"ds_write_b128 v{vVSW}, v[{WF+4}:{WF+7}] offset:1024")
    softmax_prep(a, aK)
    exps(a, aK)
    def tree_sum(base, dst):
        a(f"v_add_f32 v{vT2}, v{base}, v{base+1}")
        a(f"v_add_f32 v{vT3}, v{base+2}, v{base+3}")
        a(f"v_add_f32 v{vT4}, v{base+4}, v{base+5}")
        a(f"v_add_f32 v{vT5}, v{base+6}, v{base+7}")
        a(f"v_add_f32 v{vT2}, v{vT2}, v{base+8}")
        a(f"v_add_f32 v{vT3}, v{vT3}, v{base+9}")
        a(f"v_add_f32 v{vT4}, v{vT4}, v{base+10}")
        a(f"v_add_f32 v{vT5}, v{vT5}, v{base+11}")
        a(f"v_add_f32 v{vT2}, v{vT2}, v{base+12}")
        a(f"v_add_f32 v{vT3}, v{vT3}, v{base+13}")
        a(f"v_add_f32 v{vT4}, v{vT4}, v{vT5}")
        a(f"v_add_f32 v{vT2}, v{vT2}, v{vT3}")
        a(f"v_add_f32 v{dst}, v{vT2}, v{vT4}")
    tree_sum(EPL, vT0)
    tree_sum(EMI, vT1)
    a("s_nop 1")
    a(f"v_permlane32_swap_b32 v{vT0}, v{vT1}")
    a("s_nop 1")
    a(f"v_add_f32 v{vT0}, v{vT0}, v{vT1}")
    a(f"v_rcp_f32 v{vT0}, v{vT0}")
    a("s_nop 0")
    a(f"v_mov_b32 v{vT1}, v{vT0}")
    a("s_nop 1")
    a(f"v_permlane32_swap_b32 v{vT0}, v{vT1}")
    a("s_nop 1")
    PP, PM = WF + 8, WF + 16
    a(f"v_mov_b32 v{PP+7}, 0")
    a(f"v_mov_b32 v{PM+7}, 0")
    for sg, (src, base, rr) in enumerate(((EPL, PP, vT0), (EMI, PM, vT1))):
        for r in range(14):
            a(f"v_mul_f32 v{src+r}, v{src+r}, v{rr}")
        for j in range(7):
            a(f"v_cvt_pk_bf16_f32 v{base+j}, v{src+2*j}, v{src+2*j+1}")
        for i4 in range(4):
            a(f"v_xor_b32 v{vT2 + (i4 & 1)}, {((8*sg + 2*i4) << 3)}, v{vPHW}")
            a(f"ds_write_b64 v{vT2 + (i4 & 1)}, v[{base+2*i4}:{base+2*i4+1}]")
    a("s_waitcnt lgkmcnt(0)")
    stamp(a, cfg, "C1pre")
    a("s_barrier")
    stamp(a, cfg, "C1end")
    a.c("================ phase C2")
    a(f"s_cmp_ge_u32 s{sWV}, 4")
    a("s_cbranch_scc1 L_c2_hi")
    BF = 96
    def c2_reads(k):
        t4, s = k >> 1, k & 1
        a(f"ds_read_b64_tr_b16 v[{WF+4*k}:{WF+4*k+1}], v{vC2A0} offset:{t4*4096 + s*2048}")
        a(f"ds_read_b64_tr_b16 v[{WF+4*k+2}:{WF+4*k+3}], v{vC2A1} offset:{t4*4096 + s*2048}")
        a(f"ds_read_b128 v[{BF+4*k}:{BF+4*k+3}], v{vC2B} offset:{k*1024}")
    for k in range(5): c2_reads(k)
    a(f"s_lshl_b32 s{sT}, s{sHP}, 4")
    a(f"s_add_u32 s{sT}, s{sT}, s{sTB}")
    a(f"s_lshl_b32 s{sT}, s{sT}, 3")
    a(f"s_lshl_b32 s{sU}, s{sWV}, 1")
    a(f"s_add_u32 s{sT}, s{sT}, s{sU}")
    a(f"s_lshl_b32 s{sT}, s{sT}, 10")
    a(f"s_add_u32 s{sT}, s{sT}, {WS_P}")
    for k in range(8):
        rem = min(5, 8 - k) - 1
        a(f"s_waitcnt lgkmcnt({3*rem})")
        a(f"v_mfma_f32_32x32x16_bf16 {vr(aK,16)}, {vr(WF+4*k,4)}, {vr(BF+4*k,4)}, {'0' if k == 0 else vr(aK,16)}")
        if k + 5 < 8: c2_reads(k + 5)
    a("s_nop 11")
    for j in range(8):
        a(f"v_cvt_pk_bf16_f32 v{KB+j}, v{aK+2*j}, v{aK+2*j+1}")
    a(f"buffer_store_dwordx4 v[{KB}:{KB+3}], v{vL16}, s[{SWS}:{SWS+3}], s{sT} offen sc0 sc1")
    a(f"buffer_store_dwordx4 v[{KB+4}:{KB+7}], v{vL16}, s[{SWS}:{SWS+3}], s{sT} offen offset:1024 sc0 sc1")
    a("s_waitcnt vmcnt(2)")
    a("s_branch L_c2_done")
    a.label("L_c2_hi")
    issue_touch(a, cfg)
    for c in cfg.wo_c2: wo_op(a, c)
    a(f"s_waitcnt vmcnt({1 + len(cfg.wo_c2)})")
    a.label("L_c2_done")
    stamp(a, cfg, "C2pre")
    a("s_barrier")
    stamp(a, cfg, "C2end")
    a.c("================ q GEMM")
    a(f"v_readfirstlane_b32 s{sTAG}, v{vEPOCH}")
    a(f"s_mov_b32 s{SMI+2}, {WOBYTES}")
    a(f"s_mov_b32 s{SMI+3}, 0x00020000")
    a(f"s_mov_b32 s{sT2}, 0x10000000")
    a(f"s_mov_b32 s{sT3}, 0x10000000")
    a(f"s_add_u32 s{sTAG}, s{sTAG}, 1")
    QR = 5
    QPOS = [4, 5, 6, 0, 1, 2, 3]
    def q_reads(k):
        i, s = QPOS[k >> 2], k & 3
        b = WF + 4 * (k % QR)
        for u in range(2):
            a(f"ds_read_b64_tr_b16 v[{b+2*u}:{b+2*u+1}], v{vWQ} offset:{8192*i + (16*s + 4*u)*128}")
        a(f"s_mov_b64 exec, s[{sT2}:{sT3}]")
        a(f"ds_read_b128 v[{b}:{b+3}], v{vGA} offset:{i*128 + s*32}")
        a(f"s_mov_b64 exec, -1")
    for k in range(QR): q_reads(k)
    nwo = 0
    wo_list = [c for c in (6, 7, 8, 9, 10, 11, 0, 1, 2, 3, 4, 5) if c not in cfg.wo_late]
    wo_sched = {1 + (26 * n) // max(1, len(wo_list) - 1): c for n, c in enumerate(wo_list)}
    for k in range(28):
        rem = min(QR, 28 - k) - 1
        b = WF + 4 * (k % QR)
        xi = 4 * QPOS[k >> 2] + (k & 3)
        a(f"s_waitcnt lgkmcnt({3*rem})")
        a(f"v_mfma_f32_32x32x16_bf16 {vr(aQ,16)}, {vr(b,4)}, {vr(XF+4*xi,4)}, {'0' if k == 0 else vr(aQ,16)}")
        if k + QR < 28: q_reads(k + QR)
        if k in wo_sched:
            wo_op(a, wo_sched[k]); nwo += 1
        if k == cfg.flagstep:
            a(f"s_cmp_ge_u32 s{sWV}, 4")
            a("s_cbranch_scc1 L_noflag1")
            a(f"s_lshl_b32 s{sT}, s{sHP}, 8")
            a(f"s_lshl_b32 s{sU}, s{sTB}, 4")
            a(f"s_add_u32 s{sT}, s{sT}, s{sU}")
            a(f"s_lshl_b32 s{sU}, s{sWV}, 2")
            a(f"s_add_u32 s{sT}, s{sT}, s{sU}")
            a(f"s_add_u32 s{sT}, s{sT}, {WS_FLAG1}")
            a(f"v_mov_b32 v{vT0}, 0")
            a(f"v_mov_b32 v{vT1}, s{sTAG}")
            a(f"s_waitcnt vmcnt({nwo})")
            a("s_mov_b64 exec, 1")
            a(f"buffer_store_dword v{vT1}, v{vT0}, s[{SWS}:{SWS+3}], s{sT} offen sc0 sc1")
            a("s_mov_b64 exec, -1")
            a.label("L_noflag1")
    stamp(a, cfg, "qGEMM")
    a.c("================ q features")
    a("s_nop 11")
    a(f"v_mov_b32 v{vG}, v{aQ+12}")
    a(f"v_mov_b32 v{vG2}, v{aQ+12}")
    for j in range(8):
        a(f"v_cvt_pk_bf16_f32 v{KB+j}, v{aQ+2*j}, v{aQ+2*j+1}")
    a(f"v_permlane32_swap_b32 v{vG}, v{vG2}")
    a("s_nop 0")
    a(f"v_mfma_f32_32x32x16_bf16 {vr(aK,16)}, {vr(PF,4)}, {vr(KB,4)}, 0")
    a(f"v_mfma_f32_32x32x16_bf16 {vr(aK,16)}, {vr(PF+4,4)}, {vr(KB+4,4)}, {vr(aK,16)}")
    a(f"s_cmp_eq_u32 s{sBR}, 0")
    a(f"s_cselect_b32 s{sGS}, s{sNLOG2E}, s{sLOG2E}")
    a(f"v_mul_f32 v{vG}, s{sGS}, v{vG2}")
    a(f"v_exp_f32 v{vG}, v{vG}")
    a("s_nop 0")
    a(f"v_add_f32 v{vG}, 1.0, v{vG}")
    a(f"v_rcp_f32 v{vG}, v{vG}")
    a("s_nop 5")
    softmax_prep(a, aK)
    exps(a, aK)
    for j in range(7):
        a(f"v_cvt_pk_bf16_f32 v{EP+j}, v{EPL+2*j}, v{EPL+2*j+1}")
        a(f"v_cvt_pk_bf16_f32 v{EM+j}, v{EMI+2*j}, v{EMI+2*j+1}")
    a(f"v_mov_b32 v{EP+7}, 0")
    a(f"v_mov_b32 v{EM+7}, 0")
    stamp(a, cfg, "qfeat")
    a.c("================ sync 1")
    def poll(lab, soff_code):
        a(f"s_cmp_lg_u32 s{sWV}, 0")
        a(f"s_cbranch_scc1 {lab}_done")
        soff_code()
        a(f"v_lshlrev_b32 v{vT0}, 2, v{vLANE}")
        a(f"s_mov_b32 s{sSPIN}, 0")
        a.label(lab)
        a(f"buffer_load_dword v{vT1}, v{vT0}, s[{SWS}:{SWS+3}], s{sT} offen sc0 sc1")
        a("s_waitcnt vmcnt(0)")
        a(f"v_cmp_ne_u32 vcc, s{sTAG}, v{vT1}")
        a(f"s_add_u32 s{sSPIN}, s{sSPIN}, 1")
        a(f"s_cmp_eq_u64 vcc, 0")
        a("s_cbranch_scc1 " + lab + "_done")
        a(f"s_cmp_lt_u32 s{sSPIN}, {cfg.maxspin}")
        if cfg.sleep: a(f"s_sleep {cfg.sleep}")
        a(f"s_cbranch_scc1 {lab}")
        a.label(lab + "_done")
    def soff1():
        a(f"s_lshl_b32 s{sT}, s{sHP}, 8")
        a(f"s_add_u32 s{sT}, s{sT}, {WS_FLAG1}")
    poll("L_poll1", soff1)
    a("s_barrier")
    stamp(a, cfg, "sync1")
    a.c("================ phase 2")
    PL = XF
    a(f"s_lshl_b32 s{sT}, s{sHP}, 17")
    a(f"s_lshl_b32 s{sU}, s{sWV}, 10")
    a(f"s_add_u32 s{sT}, s{sT}, s{sU}")
    a(f"s_add_u32 s{sT}, s{sT}, {WS_P}")
    a(f"s_lshl_b32 s{sU}, s{sTB}, 13")
    for t in range(16):
        a(f"s_add_u32 s{sT2}, s{sT}, s{sU}")
        a(f"buffer_load_dwordx4 v[{PL+4*t}:{PL+4*t+3}], v{vL16}, s[{SWS}:{SWS+3}], s{sT2} offen sc0 sc1")
        if t < 15:
            a(f"s_add_u32 s{sU}, s{sU}, 8192")
            a(f"s_and_b32 s{sU}, s{sU}, 0x1ffff")
        if cfg.fair and t % cfg.fair == cfg.fair - 1 and t < 15: a("s_barrier")
    late = list(cfg.wo_late) + [12, 13]
    NWO2 = len(late)
    for c in late: wo_op(a, c)
    ACC = 16
    for j in range(8): a(f"v_mov_b32 v{ACC+j}, 0")
    stamp(a, cfg, "P2iss")
    for t in range(16):
        a(f"s_waitcnt vmcnt({NWO2 + 15 - t})")
        for d in range(4):
            a(f"v_dot2c_f32_bf16 v{ACC+2*d}, s{sC_LO}, v{PL+4*t+d}")
            a(f"v_dot2c_f32_bf16 v{ACC+2*d+1}, s{sC_HI}, v{PL+4*t+d}")
    stamp(a, cfg, "P2sum")
    a(f"s_mov_b32 s{sT2}, 0x88000000")
    a(f"s_mov_b32 s{sT3}, 0x88000000")
    a(f"v_mov_b32 v{vT1}, 0x3f803f80")
    a(f"s_lshl_b32 s{sU}, s{sWV}, 10")
    a(f"s_add_u32 s{sU}, s{sU}, {L_KVF}")
    a(f"v_add_u32 v{vT2}, s{sU}, v{vL16}")
    for d in range(4):
        a(f"v_cvt_pk_bf16_f32 v{24+d}, v{ACC+2*d}, v{ACC+2*d+1}")
    for d in range(4):
        a(f"v_cndmask_b32 v{24+d}, v{24+d}, v{vT1}, s[{sT2}:{sT3}]")
    a(f"ds_write_b128 v{vT2}, v[24:27]")
    a("s_waitcnt lgkmcnt(0)")
    a("s_barrier")
    a(f"s_lshr_b32 s{sU}, s{sWV}, 2")
    a(f"s_lshl_b32 s{sU}, s{sU}, 12")
    a(f"s_add_u32 s{sU}, s{sU}, {L_KVF}")
    a(f"v_add_u32 v{vT2}, s{sU}, v{vL16}")
    for k in range(4):
        a(f"ds_read_b128 v[{WF+4*k}:{WF+4*k+3}], v{vT2} offset:{k*1024}")
    DP, DM = 16, 32
    a(f"s_and_b32 s{sU}, s{sWV}, 3")
    a(f"s_lshl_b32 s{sT}, s{sTB}, 2")
    a(f"s_add_u32 s{sT}, s{sT}, s{sU}")
    a(f"s_lshl_b32 s{sT}, s{sT}, 1")
    a(f"s_add_u32 s{sT}, s{sT}, s{sBR}")
    a(f"s_lshl_b32 s{sT}, s{sT}, 4")
    a(f"s_lshl_b32 s{sU}, s{sH2}, 1")
    a(f"s_add_u32 s{sT}, s{sT}, s{sU}")
    a(f"s_lshr_b32 s{sU}, s{sWV}, 2")
    a(f"s_add_u32 s{sT}, s{sT}, s{sU}")
    a(f"s_lshl_b32 s{sT}, s{sT}, 11")
    a(f"s_add_u32 s{sT}, s{sT}, {WS_O}")
    a("s_waitcnt lgkmcnt(3)")
    a(f"v_mfma_f32_32x32x16_bf16 {vr(DP,16)}, {vr(WF,4)}, {vr(EP,4)}, 0")
    a("s_waitcnt lgkmcnt(1)")
    a(f"v_mfma_f32_32x32x16_bf16 {vr(DM,16)}, {vr(WF+8,4)}, {vr(EM,4)}, 0")
    a(f"v_mfma_f32_32x32x16_bf16 {vr(DP,16)}, {vr(WF+4,4)}, {vr(EP+4,4)}, {vr(DP,16)}")
    a("s_waitcnt lgkmcnt(0)")
    a(f"v_mfma_f32_32x32x16_bf16 {vr(DM,16)}, {vr(WF+12,4)}, {vr(EM+4,4)}, {vr(DM,16)}")
    a(f"v_mov_b32 v{vT3}, 0x358637bd")
    a("s_nop 10")
    a(f"v_mul_f32 v{vT1}, v{DP+14}, v{DM+15}")
    a(f"v_mul_f32 v{vT2}, v{DP+15}, v{DM+15}")
    a(f"v_fma_f32 v{vT1}, v{DM+14}, v{DP+15}, v{vT1}")
    a(f"v_fma_f32 v{vT1}, v{vT2}, v{vT3}, v{vT1}")
    a(f"v_rcp_f32 v{vT1}, v{vT1}")
    a("s_nop 0")
    a(f"v_mul_f32 v{vT1}, v{vT1}, v{vG}")
    a(f"v_mul_f32 v{vT2}, v{DM+15}, v{vT1}")
    a(f"v_mul_f32 v{vT3}, v{DP+15}, v{vT1}")
    for r in range(14):
        a(f"v_mul_f32 v{DP+r}, v{DP+r}, v{vT2}")
    for r in range(14):
        a(f"v_fmac_f32 v{DP+r}, v{DM+r}, v{vT3}")
    for j in range(7):
        a(f"v_cvt_pk_bf16_f32 v{KB+j}, v{DP+2*j}, v{DP+2*j+1}")
    a(f"v_mov_b32 v{KB+7}, 0")
    a(f"buffer_store_dwordx4 v[{KB}:{KB+3}], v{vL16}, s[{SWS}:{SWS+3}], s{sT} offen sc0 sc1")
    a(f"buffer_store_dwordx4 v[{KB+4}:{KB+7}], v{vL16}, s[{SWS}:{SWS+3}], s{sT} offen offset:1024 sc0 sc1")
    a(f"s_lshr_b32 s{sU}, s{sWV}, 1")
    a(f"s_and_b32 s{sU}, s{sU}, 1")
    a(f"s_lshl_b32 s{sT}, s{sTB}, 1")
    a(f"s_add_u32 s{sT}, s{sT}, s{sU}")
    a(f"s_lshl_b32 s{sT}, s{sT}, 4")
    a(f"s_add_u32 s{sT}, s{sT}, s{sHP}")
    a(f"s_lshl_b32 s{sT}, s{sT}, 4")
    a(f"s_lshr_b32 s{sU}, s{sWV}, 2")
    a(f"s_lshl_b32 s{sU}, s{sU}, 3")
    a(f"s_add_u32 s{sT}, s{sT}, s{sU}")
    a(f"s_and_b32 s{sU}, s{sWV}, 1")
    a(f"s_lshl_b32 s{sU}, s{sU}, 2")
    a(f"s_add_u32 s{sT}, s{sT}, s{sU}")
    a(f"s_add_u32 s{sT}, s{sT}, {WS_FLAG2}")
    a(f"v_mov_b32 v{vT1}, 0")
    a(f"v_mov_b32 v{vT2}, s{sTAG}")
    stamp(a, cfg, "P2st")
    a("s_waitcnt vmcnt(0)")
    a("s_mov_b64 exec, 1")
    a(f"buffer_store_dword v{vT2}, v{vT1}, s[{SWS}:{SWS+3}], s{sT} offen sc0 sc1")
    a("s_mov_b64 exec, -1")
    stamp(a, cfg, "P2end")
    a(f"s_cmp_ge_u32 s{sJ}, 28")
    a("s_cbranch_scc1 L_fin")
    a.c("================ phase 3")
    a("s_barrier")
    AD0, AD1, AS0, AS1 = 176, 177, 178, 179
    OF = 192
    WR = 48
    ACC3 = 16
    a(f"v_lshrrev_b32 v{vT0}, 5, v{vLANE}")
    a(f"v_and_b32 v{vT1}, 15, v{vLANE}")
    a(f"v_lshrrev_b32 v{vT2}, 2, v{vT1}")
    a(f"v_and_b32 v{vT1}, 3, v{vT1}")
    a(f"v_lshlrev_b32 v{vT1}, 3, v{vT1}")
    a(f"v_and_b32 v{vT3}, 16, v{vLANE}")
    a(f"v_lshl_add_u32 v{vT1}, v{vT3}, 1, v{vT1}")
    a(f"s_lshr_b32 s{sU}, s{sWV}, 2")
    a(f"s_mul_i32 s{sT}, s{sU}, 448")
    a(f"s_lshr_b32 s{sU}, s{sWV}, 1")
    a(f"s_and_b32 s{sU}, s{sU}, 1")
    a(f"s_mul_i32 s{sU}, s{sU}, 224")
    a(f"s_add_u32 s{sT}, s{sT}, s{sU}")
    a(f"s_mul_i32 s{sU}, s{sR2}, 28")
    a(f"s_add_u32 s{sT}, s{sT}, s{sU}")
    a(f"s_lshl_b32 s{sT}, s{sT}, 7")
    a(f"v_lshl_add_u32 v{vT3}, v{vT0}, 2, v{vT2}")
    a(f"v_lshlrev_b32 v{vT3}, 7, v{vT3}")
    a(f"v_and_b32 v{vT4}, 2, v{vT2}")
    a(f"v_lshlrev_b32 v{vT4}, 5, v{vT4}")
    a(f"v_xor_b32 v{vT5}, v{vT1}, v{vT4}")
    a(f"v_add_u32 v{vT3}, v{vT3}, v{vT5}")
    a(f"v_add_u32 v{AD0}, s{sT}, v{vT3}")
    a(f"v_xor_b32 v{AD1}, 64, v{AD0}")
    a(f"v_lshl_add_u32 v{vT3}, v{vT0}, 1, v{vT2}")
    a(f"v_add_u32 v{vT5}, 24, v{vT3}")
    a(f"v_add_u32 v{vT3}, 20, v{vT3}")
    a(f"v_cmp_gt_u32 vcc, 2, v{vT2}")
    a(f"v_lshlrev_b32 v{vT0}, 6, v{vT0}")
    a(f"v_xor_b32 v{vT4}, v{vT4}, v{vT0}")
    a(f"v_cndmask_b32 v{vT3}, v{vT3}, v{vT5}, vcc")
    a(f"v_lshlrev_b32 v{vT3}, 7, v{vT3}")
    a(f"v_xor_b32 v{vT5}, v{vT1}, v{vT4}")
    a(f"v_add_u32 v{vT3}, v{vT3}, v{vT5}")
    a(f"v_add_u32 v{AS0}, s{sT}, v{vT3}")
    a(f"v_xor_b32 v{AS1}, 64, v{AS0}")
    def wo_reads(st):
        hl, gi = st >> 1, st & 1
        if gi == 0 and hl >= 2:
            a(f"s_cmp_eq_u32 s{sR2}, {8 - hl}")
            a(f"s_cbranch_scc0 L_nowrap{hl}")
            for k in range(4):
                a(f"v_subrev_u32 v{AD0+k}, {8*3584}, v{AD0+k}")
            a.label(f"L_nowrap{hl}")
        b = WR + 8 * st
        for c2 in range(2):
            a(f"ds_read_b64_tr_b16 v[{b+4*c2}:{b+4*c2+1}], v{AD0+c2} offset:{hl*3584 + 16*gi*128}")
            if gi == 0:
                a(f"ds_read_b64_tr_b16 v[{b+4*c2+2}:{b+4*c2+3}], v{AD0+c2} offset:{hl*3584 + 8*128}")
            else:
                a(f"ds_read_b64_tr_b16 v[{b+4*c2+2}:{b+4*c2+3}], v{AS0+c2} offset:{hl*3584}")
    for st in range(16): wo_reads(st)
    a(f"s_lshl_b32 s{sT2}, s{sT64}, 1")
    a(f"s_and_b32 s{sU}, s{sWV}, 1")
    a(f"s_add_u32 s{sT2}, s{sT2}, s{sU}")
    a(f"s_lshl_b32 s{sT2}, s{sT2}, 1")
    a(f"s_lshr_b32 s{sU}, s{sWV}, 2")
    a(f"s_add_u32 s{sT2}, s{sT2}, s{sU}")
    a(f"s_lshl_b32 s{sT2}, s{sT2}, 15")
    a(f"s_lshr_b32 s{sU}, s{sWV}, 1")
    a(f"s_and_b32 s{sU}, s{sU}, 1")
    a(f"s_lshl_b32 s{sU}, s{sU}, 14")
    a(f"s_add_u32 s{sT2}, s{sT2}, s{sU}")
    a(f"s_add_u32 s{sT2}, s{sT2}, {WS_O}")
    def soff2():
        a(f"s_lshl_b32 s{sT}, s{sT64}, 8")
        a(f"s_add_u32 s{sT}, s{sT}, {WS_FLAG2}")
    stamp(a, cfg, "woiss")
    poll("L_poll2", soff2)
    a("s_waitcnt lgkmcnt(0)")
    stamp(a, cfg, "sync2pre")
    a("s_barrier")
    stamp(a, cfg, "sync2")
    a(f"s_lshl_b32 s{sU}, s{sR2}, 11")
    for st in range(16):
        a(f"s_add_u32 s{sT}, s{sT2}, s{sU}")
        a(f"buffer_load_dwordx4 v[{OF+4*st}:{OF+4*st+3}], v{vL16}, s[{SWS}:{SWS+3}], s{sT} offen sc0 sc1")
        if st < 15:
            a(f"s_add_u32 s{sU}, s{sU}, 1024")
            a(f"s_and_b32 s{sU}, s{sU}, 0x3fff")
        if cfg.fair3 and st % cfg.fair3 == cfg.fair3 - 1 and st < 15: a("s_barrier")
    stamp(a, cfg, "P3iss")
    a(f"s_and_b32 s{sU}, s{sWV}, 1")
    a(f"s_lshl_b32 s{sU}, s{sU}, 15")
    a(f"s_lshr_b32 s{sT}, s{sWV}, 1")
    a(f"s_lshl_b32 s{sT3}, s{sT}, 11")
    a(f"s_add_u32 s{sT3}, s{sT3}, s{sU}")
    a(f"v_add_u32 v{vT1}, s{sT3}, v{vL16}")
    a(f"s_lshl_b32 s{sT3}, s{sT}, 13")
    a(f"s_add_u32 s{sT3}, s{sT3}, s{sU}")
    a(f"v_add_u32 v{vT2}, s{sT3}, v{vL16}")
    a(f"s_lshl_b32 s{sT3}, s{sT64}, 1")
    a(f"s_and_b32 s{sU}, s{sWV}, 1")
    a(f"s_add_u32 s{sT3}, s{sT3}, s{sU}")
    a(f"s_mul_i32 s{sT3}, s{sT3}, {32*896}")
    a(f"s_add_u32 s{sT3}, s{sT3}, s{sCT}")
    a(f"s_lshl_b32 s{sU}, s{sT}, 5")
    a(f"s_add_u32 s{sT3}, s{sT3}, s{sU}")
    a(f"v_and_b32 v{vT3}, 31, v{vLANE}")
    a(f"v_mul_u32_u24 v{vT3}, 896, v{vT3}")
    a(f"v_lshrrev_b32 v{vT4}, 5, v{vLANE}")
    a(f"v_lshl_add_u32 v{vT3}, v{vT4}, 4, v{vT3}")
    for st in range(16):
        b = WR + 8 * st
        a(f"s_waitcnt vmcnt({15-st})")
        for c2 in range(2):
            a(f"v_mfma_f32_32x32x16_bf16 {vr(ACC3+16*c2,16)}, {vr(b+4*c2,4)}, {vr(OF+4*st,4)}, {'0' if st == 0 else vr(ACC3+16*c2,16)}")
    stamp(a, cfg, "P3mfma")
    a(f"s_cmp_eq_u32 s{sT}, 0"); a("s_cbranch_scc1 L_rs0")
    a(f"s_cmp_eq_u32 s{sT}, 1"); a("s_cbranch_scc1 L_rs1")
    a(f"s_cmp_eq_u32 s{sT}, 2"); a("s_cbranch_scc1 L_rs2")
    for kq in (3, 0, 1, 2):
        if kq != 3: a.label(f"L_rs{kq}")
        a("s_nop 9")
        for q in range(4):
            if q == kq: continue
            r0 = ACC3 + 8 * q
            a(f"ds_write_b128 v{vT1}, v[{r0}:{r0+3}] offset:{q*8192}")
            a(f"ds_write_b128 v{vT1}, v[{r0+4}:{r0+7}] offset:{q*8192+1024}")
        a("s_waitcnt lgkmcnt(0)")
        if kq != 0:
            for j in range(8): a(f"v_mov_b32 v{ACC3+j}, v{ACC3+8*kq+j}")
        a("s_barrier")
        k = 0
        for src in range(4):
            if src == kq: continue
            a(f"ds_read_b128 v[{48+8*k}:{48+8*k+3}], v{vT2} offset:{src*2048}")
            a(f"ds_read_b128 v[{48+8*k+4}:{48+8*k+7}], v{vT2} offset:{src*2048+1024}")
            k += 1
        if kq != 2: a("s_branch L_rsdone")
    a.label("L_rsdone")
    a("s_waitcnt lgkmcnt(4)")
    for j in range(8): a(f"v_add_f32 v{ACC3+j}, v{ACC3+j}, v{48+j}")
    a("s_waitcnt lgkmcnt(2)")
    for j in range(8): a(f"v_add_f32 v{ACC3+j}, v{ACC3+j}, v{56+j}")
    a("s_waitcnt lgkmcnt(0)")
    for j in range(8): a(f"v_add_f32 v{ACC3+j}, v{ACC3+j}, v{64+j}")
    for j in range(4):
        a(f"v_cvt_pk_bf16_f32 v{40+j}, v{ACC3+2*j}, v{ACC3+2*j+1}")
    a("s_nop 1")
    a(f"v_permlane32_swap_b32 v40, v42")
    a(f"v_permlane32_swap_b32 v41, v43")
    a("s_nop 1")
    a(f"buffer_store_dwordx4 v[40:43], v{vT3}, s[{SOUT}:{SOUT+3}], s{sT3} offen")
    a(f"s_or_b32 s{sT}, s2, s{sWV}")
    a(f"s_cmp_lg_u32 s{sT}, 0")
    a("s_cbranch_scc1 L_fin")
    a(f"v_mov_b32 v{vT1}, {WS_EPOCH}")
    a(f"v_mov_b32 v{vT2}, s{sTAG}")
    a("s_mov_b64 exec, 1")
    a(f"buffer_store_dword v{vT2}, v{vT1}, s[{SWS}:{SWS+3}], 0 offen sc0 sc1")
    a("s_mov_b64 exec, -1")
    a.label("L_fin")
    if cfg.prof:
        stamp(a, cfg, "fin")
        a("s_waitcnt vmcnt(0)")
        stamp(a, cfg, "end")
        a("s_memrealtime s[98:99]")
        a("s_waitcnt lgkmcnt(0)")
        a(f"v_writelane_b32 v{vPROF}, s98, 62")
        a(f"s_lshl_b32 s{sT}, s2, 3")
        a(f"s_add_u32 s{sT}, s{sT}, s{sWV}")
        a(f"s_lshl_b32 s{sT}, s{sT}, 8")
        a(f"s_add_u32 s{sT}, s{sT}, {WS_PROF}")
        a(f"v_lshlrev_b32 v{vT0}, 2, v{vLANE}")
        a(f"buffer_store_dword v{vPROF}, v{vT0}, s[{SWS}:{SWS+3}], s{sT} offen")
        open(cfg.o + ".stamps", "w").write("\n".join(STAMPS))
    a.label("L_exit")
    a("s_endpgm")
    a.label("L_end")
    return a

def wrap(a, cfg):
    hdr = open("gated_mix__linear_kernel_hedgehog__linear_kernel_hedgehog__prompt.s.ref").read().split("\n")
    out = []
    for ln in hdr:
        if ln.startswith("; @launch"):
            out.append("; @launch grid=(256,1,1) block=(512,1,1) lds=163840")
        elif ln.startswith(";"):
            out.append(ln)
        else:
            break
    out += ['.amdgcn_target "amdgcn-amd-amdhsa--gfx950"', ".text", f".globl {KNAME}", ".p2align 8", f".type {KNAME},@function",
            ".set CODE_KB_LEFT, ((L_end - L_pc) / 1024) - 1", a.text(),
            '.section .rodata,"a"', ".p2align 6", f".amdhsa_kernel {KNAME}",
            "  .amdhsa_next_free_vgpr 256", "  .amdhsa_next_free_sgpr 102", "  .amdhsa_accum_offset 256",
            "  .amdhsa_group_segment_fixed_size 0", "  .amdhsa_kernarg_size 96", "  .amdhsa_user_sgpr_count 2",
            "  .amdhsa_user_sgpr_kernarg_segment_ptr 1", "  .amdhsa_system_sgpr_workgroup_id_x 1", ".end_amdhsa_kernel"]
    return "\n".join(out) + "\n"

if __name__ == "__main__":
    ap = argparse.ArgumentParser()
    ap.add_argument("--prof", action="store_true")
    ap.add_argument("--norot", action="store_true")
    ap.add_argument("--dmafirst", action="store_true")
    ap.add_argument("--rotv", type=int, default=0)
    ap.add_argument("--exp", default="")
    ap.add_argument("--map", type=int, default=1)
    ap.add_argument("--notouch", action="store_true")
    ap.add_argument("--nopf", action="store_true")
    ap.add_argument("--flagstep", type=int, default=6)
    ap.add_argument("--fair", type=int, default=4)
    ap.add_argument("--fair3", type=int, default=0)
    ap.add_argument("--wolate", default="")
    ap.add_argument("--maxspin", type=int, default=200000)
    ap.add_argument("--sleep", type=int, default=0)
    ap.add_argument("-o", default="k.s")
    cfg = ap.parse_args()
    cfg.wo_c2 = []
    cfg.wo_late = [int(x) for x in cfg.wolate.split(",") if x]
    a = gen(cfg)
    txt = wrap(a, cfg)
    open(cfg.o, "w").write(txt)
    import hazard
    errs = hazard.check(a.text())
    for e in errs: print("HAZARD", e)
    print("wrote", cfg.o, len(txt), "bytes;", len(errs), "hazards")
```

```python
import sys, argparse
KNAME = "gated_mix__linear_kernel_hedgehog__linear_kernel_hedgehog__prompt_kernel"

class A:
    def __init__(self): self.l = []
    def __call__(self, s): self.l.append("    " + s)
    def label(self, s): self.l.append(s + ":")
    def c(self, s): self.l.append("    ; " + s)
    def text(self): return "\n".join(self.l) + "\n"

def vr(b, n=1): return f"v{b}" if n == 1 else f"v[{b}:{b+n-1}]"

XBYTES = 2048 * 448 * 2
WBYTES = 448 * 1344 * 2
WOBYTES = 448 * 448 * 2
PHIBYTES = 16 * 28 * 28 * 2
WS_FLAG1 = 0x0
WS_FLAG2 = 0x1000
WS_EPOCH = 0x4000
WS_P = 0x100000
WS_O = 0x300000
WS_PROF = 0x780000
WS_SIZE = 0x800000
S0, S1, S2, S3 = 0, 32768, 65536, 98304
LM = 131072
L_WQ = S3
L_PHI = 155648
L_GATE = 159744
L_PHIS = S0
L_VS = S1
L_KVF = LM
LOG2E = 0x3FB8AA3B
CH_W = 64 * 2688

s_AX, s_AW, s_APHI, s_AWO, s_BX, s_BW, s_BPHI, s_BWO = 4, 6, 8, 10, 12, 14, 16, 18
s_GATE, s_OUT, s_DBG, s_WS = 20, 22, 24, 26
SX, SW, SWS, SOA, SOB, SOUT, SMI = 28, 32, 36, 40, 44, 48, 52
sWV, sTB, sBR, sH2, sHP, sC0, sWRAP = 56, 57, 58, 59, 60, 61, 62
sXo, sWo, sT, sU, sLdsX, sLdsW = 63, 64, 65, 66, 67, 68
sTAG, sJ = 69, 70
sLdsWp, sWOBp = 71, 72
sM0, sM1 = 74, 75
sT2, sT3, sT4 = 76, 77, 78
sC_LO, sC_HI = 79, 80
sT64, sCT = 81, 82
sSPIN = 83
sEX0 = 84
sR2, sX8 = 88, 89
sA, sB = 90, 91
sWOB = 93
sK128, sKCH = 94, 95
sPOLL = 96
sQ = [4, 5, 6, 7, 12, 13, 14]

vLANE, vVSW, vC, vDO = 1, 2, 3, 4
vT0, vT1, vT2, vT3, vT4, vT5 = 5, 6, 7, 8, 9, 10
vG2, vEPOCH, vJUNK, vL16, vPROF = 11, 12, 13, 14, 15
aK, aV, aQ = 16, 32, 32
WF, PF, KB = 48, 80, 88
EPL, EMI = 96, 110
EP, EM = 124, 132
PHA = [124, 125, 126, 127, 136, 137, 138, 139]
vC2A0, vC2A1, vC2B = 128, 129, 130
CONST4 = 132
vG, vGA, vWQ, vPHW = 140, 141, 142, 143
XF = 144
vXA, vXB = 96, 100
vWA, vWB = 104, 105
vDX0, vDX1, vDW = 106, 107, 108
vDQ = 131

STAMPS = []
def stamp(a, cfg, name):
    if cfg.prof:
        if name not in STAMPS: STAMPS.append(name)
        idx = STAMPS.index(name)
        a(f"s_memtime s[100:101]")
        a("s_waitcnt lgkmcnt(0)")
        a(f"v_writelane_b32 v{vPROF}, s100, {idx}")

def srd(a, d, base, size):
    a(f"s_mov_b32 s{d}, s{base}")
    a(f"s_mov_b32 s{d+1}, s{base+1}")
    a(f"s_mov_b32 s{d+2}, {size}")
    a(f"s_mov_b32 s{d+3}, 0x00020000")

def kv_ops(a, pos):
    base = (pos % 4) * 32768
    def x0():
        a(f"s_add_u32 m0, s{sLdsX}, {base}")
        a(f"s_cmp_eq_u32 s{sWRAP}, {pos + 1}")
        a(f"buffer_load_dwordx4 v{vDX0}, s[{SX}:{SX+3}], s{sXo} offen lds")
        a(f"s_cselect_b32 s{sT2}, {(128 - 896) & 0xffffffff:#x}, s{sK128}")
        a(f"s_cselect_b32 s{sT3}, {(CH_W - 7*CH_W) & 0xffffffff:#x}, s{sKCH}")
    def x1():
        a(f"s_add_u32 m0, s{sLdsX}, {base + 1024}")
        a(f"s_sub_u32 s{sQ[pos]}, s{sWo}, 896")
        a(f"buffer_load_dwordx4 v{vDX1}, s[{SX}:{SX+3}], s{sXo} offen lds")
        a(f"s_add_u32 s{sXo}, s{sXo}, s{sT2}")
    def wk():
        a(f"s_add_u32 m0, s{sLdsW}, {base + 16384}")
        a(f"s_add_u32 s{sT}, s{sWo}, 896")
        a(f"buffer_load_dwordx4 v{vDW}, s[{SW}:{SW+3}], s{sWo} offen lds")
    def wv():
        a(f"s_add_u32 m0, s{sLdsW}, {base + 16384 + 8192}")
        a(f"s_add_u32 s{sWo}, s{sWo}, s{sT3}")
        a(f"buffer_load_dwordx4 v{vDW}, s[{SW}:{SW+3}], s{sT} offen lds")
    return [x0, x1, wk, wv]

def wq_op(a, pos, partner=False):
    def f():
        a(f"s_add_u32 m0, s{sLdsWp if partner else sLdsW}, {L_WQ + 8192*pos}")
        if partner:
            a(f"s_sub_u32 s{sT}, s{sQ[pos]}, {4*8*2688}")
            a(f"buffer_load_dwordx4 v{vDQ}, s[{SW}:{SW+3}], s{sT} offen lds")
        else:
            a("s_nop 0")
            a(f"buffer_load_dwordx4 v{vDQ if vDQ_live[0] else vDW}, s[{SW}:{SW+3}], s{sQ[pos]} offen lds")
    return f
vDQ_live = [False]

def wo_op(a, c, partner=False):
    a(f"s_add_u32 m0, s{sLdsWp if partner else sLdsW}, {c*8192}")
    a(f"s_add_u32 s{sT}, s{sWOBp if partner else sWOB}, {(c % 7) * 8 * 8 * 896}")
    S = SOA if c < 7 else SOB
    a(f"buffer_load_dwordx4 v{vDO}, s[{S}:{S+3}], s{sT} offen lds")

def issue_misc(a):
    a(f"s_cmp_ge_u32 s{sWV}, 4")
    a(f"s_cbranch_scc1 L_gate_dma")
    a(f"s_cmp_eq_u32 s{sBR}, 0")
    a(f"s_cselect_b32 s{SMI}, s{s_APHI}, s{s_BPHI}")
    a(f"s_cselect_b32 s{SMI+1}, s{s_APHI+1}, s{s_BPHI+1}")
    a(f"s_mov_b32 s{SMI+2}, {PHIBYTES}")
    a(f"s_mov_b32 s{SMI+3}, 0x00020000")
    a(f"s_mul_i32 s{sT}, s{sH2}, {2*1568}")
    a(f"s_lshl_b32 s{sU}, s{sWV}, 10")
    a(f"s_add_u32 s{sT}, s{sT}, s{sU}")
    a(f"s_add_u32 m0, s{sU}, {L_PHI}")
    a("s_nop 0")
    a(f"buffer_load_dwordx4 v{vL16}, s[{SMI}:{SMI+3}], s{sT} offen lds")
    a(f"s_branch L_gate_done")
    a.label(f"L_gate_dma")
    a(f"s_mov_b32 s{SMI}, s{s_GATE}")
    a(f"s_mov_b32 s{SMI+1}, s{s_GATE+1}")
    a(f"s_mov_b32 s{SMI+2}, 896")
    a(f"s_mov_b32 s{SMI+3}, 0x00020000")
    a(f"s_and_b32 s{sU}, s{sWV}, 1")
    a(f"s_mul_i32 s{sU}, s{sU}, 896")
    a(f"s_add_u32 m0, s{sU}, {L_GATE}")
    a(f"s_mov_b32 exec_lo, -1")
    a(f"s_mov_b32 exec_hi, 0x00ffffff")
    a(f"buffer_load_dwordx4 v{vL16}, s[{SMI}:{SMI+3}], 0 offen lds")
    a(f"s_mov_b64 exec, -1")
    a.label(f"L_gate_done")

def issue_epoch(a, cfg):
    a(f"v_lshlrev_b32 v{vJUNK}, 21, v{vLANE}")
    a(f"v_min_u32 v{vJUNK}, 0x600000, v{vJUNK}")
    a(f"v_add_u32 v{vJUNK}, {WS_EPOCH}, v{vJUNK}")
    a(f"buffer_load_dword v{vEPOCH}, v{vJUNK}, s[{SWS}:{SWS+3}], 0 offen sc0 sc1")

def issue_touch(a, cfg):
    a(f"v_lshlrev_b32 v{vT3}, 17, v{vLANE}")
    a(f"s_and_b32 s{sT}, s{sWV}, 3")
    a(f"s_cmp_eq_u32 s{sT}, 1")
    a(f"s_cselect_b32 s{SMI}, s{s_AWO}, s{s_OUT}")
    a(f"s_cselect_b32 s{SMI+1}, s{s_AWO+1}, s{s_OUT+1}")
    a(f"s_cmp_eq_u32 s{sT}, 2")
    a(f"s_cselect_b32 s{SMI}, s{s_BWO}, s{SMI}")
    a(f"s_cselect_b32 s{SMI+1}, s{s_BWO+1}, s{SMI+1}")
    a(f"s_mov_b32 s{SMI+2}, {WOBYTES}")
    a(f"s_mov_b32 s{SMI+3}, 0x00020000")
    a(f"buffer_load_dword v0, v{vT3}, s[{SMI}:{SMI+3}], 0 offen")

def split_parts(fn, n):
    t = A(); fn(t)
    groups = []; cur = []
    for ln in t.l:
        cur.append(ln)
        if not ln.strip().startswith("v_cmp") and "s_nop" not in ln:
            groups.append(cur); cur = []
    if cur: groups.append(cur)
    parts = [[] for _ in range(n)]
    for k, g in enumerate(groups): parts[min(n - 1, k * n // len(groups))] += g
    return parts

def setup(a, cfg):
    a(f"v_lshlrev_b32 v{vL16}, 4, v{vLANE}")
    a(f"v_and_b32 v{vT0}, 31, v{vLANE}")
    a(f"v_lshrrev_b32 v{vT1}, 5, v{vLANE}")
    a(f"v_lshrrev_b32 v{vT2}, 1, v{vT0}")
    a(f"v_and_b32 v{vT2}, 7, v{vT2}")
    a(f"v_xor_b32 v{vT2}, v{vT2}, v{vT1}")
    a(f"v_lshlrev_b32 v{vT2}, 4, v{vT2}")
    a(f"s_and_b32 s{sA}, s{sWV}, 3")
    a(f"s_lshl_b32 s{sA}, s{sA}, 12")
    a(f"v_lshlrev_b32 v{vT3}, 7, v{vT0}")
    a(f"v_add_u32 v{vT3}, s{sA}, v{vT3}")
    a(f"v_add_u32 v{vT3}, v{vT3}, v{vT2}")
    for s in range(4):
        a(f"v_xor_b32 v{vXA+s}, {32*s}, v{vT3}")
        a(f"v_add_u32 v{vXB+s}, 65536, v{vXA+s}")
    a(f"v_and_b32 v{vT2}, 15, v{vLANE}")
    a(f"v_lshrrev_b32 v{vT3}, 2, v{vT2}")
    a(f"v_and_b32 v{vT2}, 3, v{vT2}")
    a(f"v_lshlrev_b32 v{vT2}, 3, v{vT2}")
    a(f"v_and_b32 v{vT4}, 16, v{vLANE}")
    a(f"v_lshlrev_b32 v{vT4}, 1, v{vT4}")
    a(f"v_add_u32 v{vT2}, v{vT2}, v{vT4}")
    a(f"s_lshr_b32 s{sA}, s{sWV}, 2")
    a(f"s_mul_i32 s{sB}, s{sA}, 56")
    a(f"v_add_u32 v{vT2}, s{sB}, v{vT2}")
    a(f"v_and_b32 v{vT4}, 2, v{vT3}")
    a(f"v_lshlrev_b32 v{vT4}, 5, v{vT4}")
    a(f"v_xor_b32 v{vT2}, v{vT2}, v{vT4}")
    a(f"v_lshlrev_b32 v{vT4}, 3, v{vT1}")
    a(f"v_add_u32 v{vT4}, v{vT4}, v{vT3}")
    a(f"v_lshlrev_b32 v{vT4}, 7, v{vT4}")
    a(f"v_add_u32 v{vWA}, v{vT4}, v{vT2}")
    a(f"v_add_u32 v{vWB}, 65536, v{vWA}")
    a(f"v_add_u32 v{vWQ}, {L_WQ}, v{vWA}")
    a(f"s_lshl_b32 s{sB}, s{sC0}, 7")
    a(f"s_add_u32 s{sB}, s{sB}, {L_GATE}")
    a(f"v_lshlrev_b32 v{vGA}, 4, v{vT1}")
    a(f"v_add_u32 v{vGA}, s{sB}, v{vGA}")
    a(f"v_and_b32 v{vT2}, 5, v{vT0}")
    a(f"v_and_b32 v{vT3}, 2, v{vT0}")
    a(f"v_lshlrev_b32 v{vT3}, 2, v{vT3}")
    a(f"v_or_b32 v{vT2}, v{vT2}, v{vT3}")
    a(f"v_and_b32 v{vT3}, 8, v{vT0}")
    a(f"v_lshrrev_b32 v{vT3}, 2, v{vT3}")
    a(f"v_or_b32 v{vT2}, v{vT2}, v{vT3}")
    a(f"v_xor_b32 v{vT2}, v{vT2}, v{vT1}")
    a(f"v_lshlrev_b32 v{vT2}, 3, v{vT2}")
    a(f"v_lshlrev_b32 v{vT3}, 7, v{vT0}")
    a(f"v_add_u32 v{vT2}, v{vT2}, v{vT3}")
    a(f"s_and_b32 s{sB}, s{sWV}, 3")
    a(f"s_lshl_b32 s{sB}, s{sB}, 12")
    a(f"s_lshl_b32 s{sA}, s{sA}, 14")
    a(f"s_add_u32 s{sB}, s{sB}, s{sA}")
    a(f"s_add_u32 s{sB}, s{sB}, {L_PHIS}")
    a(f"v_add_u32 v{vPHW}, s{sB}, v{vT2}")
    for sg in range(2):
        for i4 in range(4):
            a(f"v_xor_b32 v{PHA[4*sg+i4]}, {((8*sg + 2*i4) << 3)}, v{vPHW}")
    a(f"v_add_u32 v{vT2}, 2, v{vT0}")
    a(f"v_subrev_u32 v{vT3}, 2, v{vT0}")
    a(f"v_mov_b32 v{vT4}, v{vT0}")
    a(f"v_cmp_lt_u32 vcc, 25, v{vT0}")
    a("s_nop 1")
    a(f"v_cndmask_b32 v{vT4}, v{vT4}, v{vT2}, vcc")
    a(f"v_cmp_lt_u32 vcc, 27, v{vT0}")
    a("s_nop 1")
    a(f"v_cndmask_b32 v{vT4}, v{vT4}, v{vT3}, vcc")
    a(f"v_cmp_lt_u32 vcc, 29, v{vT0}")
    a("s_nop 1")
    a(f"v_cndmask_b32 v{vT4}, v{vT4}, v{vT0}, vcc")
    a(f"v_lshlrev_b32 v{vT2}, 5, v{vT1}")
    a(f"v_add_u32 v{vT4}, v{vT4}, v{vT2}")
    a(f"v_lshlrev_b32 v{vT4}, 4, v{vT4}")
    a(f"s_lshl_b32 s{sB}, s{sWV}, 11")
    a(f"s_add_u32 s{sB}, s{sB}, {L_VS}")
    a(f"v_add_u32 v{vVSW}, s{sB}, v{vT4}")
    a(f"v_and_b32 v{vT2}, 1, v{vT0}")
    a(f"v_subrev_u32 v{vT2}, 1, v{vT2}")
    a(f"v_and_b32 v{CONST4}, 0x3f803f80, v{vT2}")
    for i in range(1, 4): a(f"v_mov_b32 v{CONST4+i}, v{CONST4}")
    a(f"v_mov_b32 v{vC}, {LOG2E:#x}")
    a(f"v_mov_b32 v{vDQ}, v{vDW}")
    a(f"v_and_b32 v{vT0}, 15, v{vLANE}")
    a(f"v_lshrrev_b32 v{vT2}, 2, v{vT0}")
    a(f"v_and_b32 v{vT0}, 3, v{vT0}")
    a(f"v_and_b32 v{vT3}, 16, v{vLANE}")
    a(f"v_lshrrev_b32 v{vT3}, 2, v{vT3}")
    a(f"v_add_u32 v{vT0}, v{vT0}, v{vT3}")
    a(f"s_and_b32 s{sA}, s{sWV}, 1")
    a(f"s_lshl_b32 s{sA}, s{sA}, 3")
    a(f"v_add_u32 v{vT0}, s{sA}, v{vT0}")
    a(f"v_lshlrev_b32 v{vT3}, 2, v{vT1}")
    a(f"v_add_u32 v{vT2}, v{vT2}, v{vT3}")
    a(f"v_and_b32 v{vT3}, 5, v{vT2}")
    a(f"v_and_b32 v{vT4}, 2, v{vT2}")
    a(f"v_lshlrev_b32 v{vT4}, 2, v{vT4}")
    a(f"v_or_b32 v{vT3}, v{vT3}, v{vT4}")
    a(f"v_xor_b32 v{vT3}, v{vT3}, v{vT0}")
    a(f"v_lshlrev_b32 v{vT3}, 3, v{vT3}")
    a(f"v_lshlrev_b32 v{vT4}, 7, v{vT2}")
    a(f"v_add_u32 v{vT3}, v{vT3}, v{vT4}")
    a(f"s_lshr_b32 s{sA}, s{sWV}, 1")
    a(f"s_and_b32 s{sA}, s{sA}, 1")
    a(f"s_lshl_b32 s{sB}, s{sA}, 14")
    a(f"s_add_u32 s{sB}, s{sB}, {L_PHIS}")
    a(f"v_add_u32 v{vC2A0}, s{sB}, v{vT3}")
    a(f"v_xor_b32 v{vC2A1}, 16, v{vC2A0}")
    a(f"v_add_u32 v{vC2A1}, 1024, v{vC2A1}")
    a(f"s_lshl_b32 s{sA}, s{sA}, 13")
    a(f"s_add_u32 s{sA}, s{sA}, {L_VS}")
    a(f"v_add_u32 v{vC2B}, s{sA}, v{vL16}")
    a(f"v_lshrrev_b32 v{vT0}, 3, v{vLANE}")
    a(f"v_and_b32 v{vT1}, 7, v{vLANE}")
    a(f"v_and_b32 v{vT2}, 2, v{vT0}")
    a(f"v_lshlrev_b32 v{vT3}, 1, v{vT2}")
    a(f"v_xor_b32 v{vT3}, v{vT1}, v{vT3}")
    a(f"v_lshlrev_b32 v{vT3}, 4, v{vT3}")
    a(f"v_mul_u32_u24 v{vT4}, 896, v{vT0}")
    a(f"v_add_u32 v{vDO}, v{vT4}, v{vT3}")
    a(f"s_min_u32 s{sA}, s{sJ}, 27")
    a(f"s_mul_i32 s{sB}, s{sA}, 37")
    a(f"s_lshr_b32 s{sB}, s{sB}, 8")
    a(f"s_lshl_b32 s{sT64}, s{sX8}, 2")
    a(f"s_add_u32 s{sT64}, s{sT64}, s{sB}")
    a(f"s_mul_i32 s{sB}, s{sB}, 7")
    a(f"s_sub_u32 s{sR2}, s{sA}, s{sB}")
    a(f"s_lshl_b32 s{sCT}, s{sR2}, 7")
    a(f"s_mul_i32 s{sWOB}, s{sWV}, {8*896}")
    a(f"s_add_u32 s{sWOB}, s{sWOB}, s{sCT}")
    a(f"s_sub_u32 s{sWOBp}, s{sWOB}, {4*8*896}")
    a(f"s_sub_u32 s{sLdsWp}, s{sLdsW}, 4096")
    a(f"s_mov_b32 s{sC_LO}, 0x00003f80")
    a(f"s_mov_b32 s{sC_HI}, 0x3f800000")

def softmax_prep(a, P):
    a(f"v_max3_f32 v{vT2}, v{P}, v{P+1}, v{P+2}")
    a(f"v_min3_f32 v{vT1}, v{P}, v{P+1}, v{P+2}")
    a(f"v_max3_f32 v{vT3}, v{P+3}, v{P+4}, v{P+5}")
    a(f"v_min3_f32 v{vG2}, v{P+3}, v{P+4}, v{P+5}")
    a(f"v_max3_f32 v{vT4}, v{P+6}, v{P+7}, v{P+8}")
    a(f"v_min3_f32 v{vJUNK}, v{P+6}, v{P+7}, v{P+8}")
    a(f"v_max3_f32 v{vT5}, v{P+9}, v{P+10}, v{P+11}")
    a(f"v_min3_f32 v{vT0}, v{P+9}, v{P+10}, v{P+11}")
    a(f"v_max3_f32 v{vT2}, v{P+12}, v{P+13}, v{vT2}")
    a(f"v_min3_f32 v{vT1}, v{P+12}, v{P+13}, v{vT1}")
    a(f"v_max3_f32 v{vT3}, v{vT3}, v{vT4}, v{vT5}")
    a(f"v_min3_f32 v{vG2}, v{vG2}, v{vJUNK}, v{vT0}")
    a(f"v_max_f32 v{vT0}, v{vT2}, v{vT3}")
    a(f"v_min_f32 v{vT1}, v{vT1}, v{vG2}")
    a(f"v_mul_f32_e64 v{vT0}, -v{vC}, v{vT0}")
    a(f"v_mul_f32 v{vT1}, v{vC}, v{vT1}")
    a("s_nop 1")
    a(f"v_permlane32_swap_b32 v{vT0}, v{vT1}")
    a("s_nop 1")
    a(f"v_min_f32 v{vT0}, v{vT0}, v{vT1}")
    a(f"v_mov_b32 v{vT1}, v{vT0}")
    a("s_nop 1")
    a(f"v_permlane32_swap_b32 v{vT0}, v{vT1}")
    a("s_nop 1")

def exps(a, P):
    for r in range(14):
        a(f"v_fma_f32 v{EPL+r}, v{P+r}, v{vC}, v{vT0}")
        a(f"v_fma_f32 v{EMI+r}, v{P+r}, -v{vC}, v{vT1}")
    for r in range(14):
        a(f"v_exp_f32 v{EPL+r}, v{EPL+r}")
    for r in range(14):
        a(f"v_exp_f32 v{EMI+r}, v{EMI+r}")

def pf_frags(a):
    a.c("w_phi^T fragments")
    a(f"v_and_b32 v{vT0}, 15, v{vLANE}")
    a(f"v_lshrrev_b32 v{vT1}, 2, v{vT0}")
    a(f"v_and_b32 v{vT0}, 3, v{vT0}")
    a(f"v_and_b32 v{vT2}, 16, v{vLANE}")
    a(f"v_lshrrev_b32 v{vT2}, 2, v{vT2}")
    a(f"v_add_u32 v{vT0}, v{vT0}, v{vT2}")
    a(f"v_min_u32 v{vT0}, 6, v{vT0}")
    a(f"v_lshlrev_b32 v{vT0}, 3, v{vT0}")
    a(f"v_lshrrev_b32 v{vT2}, 5, v{vLANE}")
    a(f"v_lshlrev_b32 v{vT2}, 2, v{vT2}")
    a(f"v_add_u32 v{vT1}, v{vT1}, v{vT2}")
    a(f"v_mul_u32_u24 v{vT1}, 56, v{vT1}")
    a(f"v_add_u32 v{vT0}, v{vT0}, v{vT1}")
    a(f"s_lshr_b32 s{sA}, s{sWV}, 2")
    a(f"s_mul_i32 s{sA}, s{sA}, 1568")
    a(f"s_add_u32 s{sA}, s{sA}, {L_PHI}")
    a(f"v_add_u32 v{vT0}, s{sA}, v{vT0}")
    for s in range(2):
        for u in range(2):
            a(f"ds_read_b64_tr_b16 v[{PF+4*s+2*u}:{PF+4*s+2*u+1}], v{vT0} offset:{(16*s+8*u)*56}")

def pf_fix(a):
    for d in range(8):
        a(f"v_mov_b32_dpp v{PF+d}, v{PF+d} row_shr:2 row_mask:0xa bank_mask:0x8")
    a(f"s_mov_b32 exec_lo, 0")
    a(f"v_mov_b32 v{PF+6}, 0")
    a(f"v_mov_b32 v{PF+7}, 0")
    a(f"s_mov_b64 exec, -1")

def phase_b(a, cfg):
    waits = [4, 5, 5, 5, 5, 4, 4]
    for i in range(7):
        sl = i % 4
        xa = vXA if sl < 2 else vXB
        wa = vWA if sl < 2 else vWB
        so = (sl & 1) * 32768
        a(f"s_waitcnt vmcnt({waits[i]}) lgkmcnt(0)")
        a("s_barrier")
        stamp(a, cfg, f"chunk{i}")
        ops = []
        if i <= 4: ops += kv_ops(a, i + 2)
        if i == 0: ops.append(lambda: issue_misc(a))
        if i == 2: ops.append(lambda: issue_epoch(a, cfg))
        if i == 5: ops += [wq_op(a, 4), wq_op(a, 5), wq_op(a, 6), wq_op(a, 0)]
        if i == 6 and not cfg.wqlate: ops += [wq_op(a, 1), wq_op(a, 2), wq_op(a, 3)]
        def reads(s):
            a(f"ds_read_b128 v[{XF+4*(4*i+s)}:{XF+4*(4*i+s)+3}], v{xa+s} offset:{so}")
            for sec in range(2):
                for u in range(2):
                    b = WF + 8*s + 4*sec + 2*u
                    a(f"ds_read_b64_tr_b16 v[{b}:{b+1}], v{wa} offset:{so + 16384 + sec*8192 + (16*s + 4*u)*128}")
        def mf(s):
            x = vr(XF + 4*(4*i+s), 4)
            first = (i == 0 and s == 0)
            a(f"v_mfma_f32_32x32x16_bf16 {vr(aK,16)}, {vr(WF+8*s,4)}, {x}, {'0' if first else vr(aK,16)}")
            a(f"v_mfma_f32_32x32x16_bf16 {vr(aV,16)}, {x}, {vr(WF+8*s+4,4)}, {'0' if first else vr(aV,16)}")
        def pop():
            if ops: ops.pop(0)()
        reads(0); reads(1); reads(2)
        a("s_waitcnt lgkmcnt(10)")
        mf(0)
        reads(3)
        pop()
        a("s_waitcnt lgkmcnt(10)")
        mf(1)
        pop()
        a("s_waitcnt lgkmcnt(5)")
        mf(2)
        pop()
        if i == 4: pf_frags(a)
        if i == 6:
            a(f"s_mov_b32 exec_lo, 0xf0000000")
            a(f"s_mov_b32 exec_hi, 0xf0000000")
            a(f"ds_write_b128 v{vVSW}, v[{CONST4}:{CONST4+3}]")
            a(f"ds_write_b128 v{vVSW}, v[{CONST4}:{CONST4+3}] offset:1024")
            a(f"s_mov_b64 exec, -1")
            a("s_waitcnt lgkmcnt(2)")
        elif i == 4:
            a("s_waitcnt lgkmcnt(4)")
        else:
            a("s_waitcnt lgkmcnt(0)")
        mf(3)
        while ops: pop()
        if i == 4:
            a("s_waitcnt lgkmcnt(0)")
            pf_fix(a)

def gen(cfg):
    a = A()
    a.label(KNAME)
    a("s_cmp_ge_u32 s2, 256")
    a("s_cbranch_scc1 L_exit")
    if cfg.prof:
        a("s_memrealtime s[98:99]")
        a("s_waitcnt lgkmcnt(0)")
        a(f"v_mov_b32 v{vPROF}, 0")
        a(f"v_writelane_b32 v{vPROF}, s98, 63")
        stamp(a, cfg, "start")
    a("s_load_dwordx16 s[4:19], s[0:1], 0")
    a("s_load_dwordx8 s[20:27], s[0:1], 64")
    a(f"v_lshrrev_b32 v{vT0}, 6, v0")
    a(f"v_and_b32 v{vLANE}, 63, v0")
    a(f"s_lshr_b32 s{sJ}, s2, 3")
    a(f"v_readfirstlane_b32 s{sWV}, v{vT0}")
    a(f"s_getpc_b64 s[{sT2}:{sT3}]")
    a.label("L_pc")
    a(f"s_and_b32 s{sT}, s{sJ}, 1")
    a(f"s_lshl_b32 s{sT}, s{sT}, 3")
    a(f"s_add_u32 s{sT}, s{sT}, s{sWV}")
    a(f"s_min_u32 s{sT}, s{sT}, CODE_KB_LEFT")
    a(f"s_lshl_b32 s{sT}, s{sT}, 10")
    a(f"v_lshlrev_b32 v{vT1}, 4, v{vLANE}")
    a(f"v_add_u32 v{vT1}, s{sT}, v{vT1}")
    if not cfg.nopf: a(f"global_load_dwordx4 v[{KB}:{KB+3}], v{vT1}, s[{sT2}:{sT3}]")
    a(f"s_and_b32 s{sX8}, s2, 7")
    a(f"s_and_b32 s{sT}, s{sX8}, 1")
    a(f"s_lshl_b32 s{sT}, s{sT}, 3")
    a(f"s_and_b32 s{sC0}, s{sJ}, 7")
    a(f"s_add_u32 s{sTB}, s{sT}, s{sC0}")
    a(f"s_lshr_b32 s{sBR}, s{sX8}, 2")
    a(f"s_and_b32 s{sH2}, s{sX8}, 2")
    a(f"s_lshl_b32 s{sH2}, s{sH2}, 1")
    a(f"s_lshr_b32 s{sT}, s{sJ}, 3")
    a(f"s_add_u32 s{sH2}, s{sH2}, s{sT}")
    a(f"s_lshl_b32 s{sT}, s{sT}, 1")
    a(f"s_add_u32 s{sC0}, s{sC0}, s{sT}")
    a(f"s_cmp_ge_u32 s{sC0}, 7")
    a(f"s_cselect_b32 s{sT}, 7, 0")
    a(f"s_sub_u32 s{sC0}, s{sC0}, s{sT}")
    a(f"s_lshl_b32 s{sHP}, s{sBR}, 3")
    a(f"s_add_u32 s{sHP}, s{sHP}, s{sH2}")
    a(f"s_sub_u32 s{sWRAP}, 7, s{sC0}")
    a(f"s_lshl_b32 s{sT}, s{sTB}, 7")
    a(f"s_lshl_b32 s{sU}, s{sWV}, 4")
    a(f"s_add_u32 s{sT}, s{sT}, s{sU}")
    a(f"s_mul_i32 s{sXo}, s{sT}, 896")
    a(f"s_lshl_b32 s{sT}, s{sC0}, 7")
    a(f"s_add_u32 s{sXo}, s{sXo}, s{sT}")
    a(f"s_mul_i32 s{sWo}, s{sWV}, {8*2688}")
    a(f"s_mul_i32 s{sT}, s{sH2}, 112")
    a(f"s_add_u32 s{sWo}, s{sWo}, s{sT}")
    a(f"s_mul_i32 s{sT}, s{sC0}, {CH_W}")
    a(f"s_add_u32 s{sWo}, s{sWo}, s{sT}")
    a(f"s_add_u32 s{sWo}, s{sWo}, 896")
    a(f"s_lshl_b32 s{sLdsX}, s{sWV}, 11")
    a(f"s_lshl_b32 s{sLdsW}, s{sWV}, 10")
    a(f"s_movk_i32 s{sK128}, 128")
    a(f"s_mov_b32 s{sKCH}, {CH_W}")
    a(f"v_lshrrev_b32 v{vT0}, 3, v{vLANE}")
    a(f"v_and_b32 v{vT1}, 7, v{vLANE}")
    a(f"v_lshrrev_b32 v{vT2}, 1, v{vT0}")
    a(f"v_xor_b32 v{vT3}, v{vT1}, v{vT2}")
    a(f"v_lshlrev_b32 v{vT3}, 4, v{vT3}")
    a(f"v_mul_u32_u24 v{vT4}, 896, v{vT0}")
    a(f"v_add_u32 v{vDX0}, v{vT4}, v{vT3}")
    a(f"v_xor_b32 v{vT3}, 64, v{vT3}")
    a(f"v_add_u32 v{vDX1}, v{vT4}, v{vT3}")
    a(f"v_add_u32 v{vDX1}, {8*896}, v{vDX1}")
    a(f"v_and_b32 v{vT3}, 1, v{vT2}")
    a(f"v_lshlrev_b32 v{vT3}, 2, v{vT3}")
    a(f"v_xor_b32 v{vT3}, v{vT1}, v{vT3}")
    a(f"v_add_u32 v{vT5}, 1, v{vT3}")
    a(f"v_lshrrev_b32 v{vT5}, 3, v{vT5}")
    a(f"v_lshlrev_b32 v{vT5}, 30, v{vT5}")
    a(f"v_lshlrev_b32 v{vT3}, 4, v{vT3}")
    a(f"v_mul_u32_u24 v{vT4}, 2688, v{vT0}")
    a(f"v_add3_u32 v{vDW}, v{vT4}, v{vT3}, v{vT5}")
    a("s_waitcnt lgkmcnt(0)")
    stamp(a, cfg, "kernarg")
    srd(a, SX, s_AX, XBYTES)
    a(f"s_cmp_eq_u32 s{sBR}, 0")
    a(f"s_cselect_b32 s{SW}, s{s_AW}, s{s_BW}")
    a(f"s_cselect_b32 s{SW+1}, s{s_AW+1}, s{s_BW+1}")
    a(f"s_mov_b32 s{SW+2}, {WBYTES}")
    a(f"s_mov_b32 s{SW+3}, 0x00020000")
    for f in kv_ops(a, 0): f()
    stamp(a, cfg, "c0iss")
    if cfg.exp == "lat0":
        a("s_waitcnt vmcnt(3)"); stamp(a, cfg, "x0land")
        a("s_waitcnt vmcnt(1)"); stamp(a, cfg, "wkland")
        a("s_waitcnt vmcnt(0)"); stamp(a, cfg, "c0land")
    a("s_barrier")
    stamp(a, cfg, "bar0")
    parts = split_parts(lambda t: setup(t, cfg), 5)
    a.l += parts[0]
    for k, f in enumerate(kv_ops(a, 1)):
        f()
        a.l += parts[k + 1]
    srd(a, SWS, s_WS, WS_SIZE)
    srd(a, SOUT, s_OUT, XBYTES)
    srd(a, SOA, s_AWO, WOBYTES)
    srd(a, SOB, s_BWO, WOBYTES)
    stamp(a, cfg, "c1iss")
    phase_b(a, cfg)
    stamp(a, cfg, "Bend")

    a.c("================ phase C1")
    a(f"s_mov_b32 s{sM0}, 0x0fffffff")
    a(f"s_mov_b32 s{sM1}, 0x0fffffff")
    a("s_nop 8")
    for j in range(8):
        a(f"v_cvt_pk_bf16_f32 v{KB+j}, v{aK+2*j}, v{aK+2*j+1}")
    a("s_nop 1")
    a(f"v_mfma_f32_32x32x16_bf16 {vr(aK,16)}, {vr(PF,4)}, {vr(KB,4)}, 0")
    a(f"v_mfma_f32_32x32x16_bf16 {vr(aK,16)}, {vr(PF+4,4)}, {vr(KB+4,4)}, {vr(aK,16)}")
    for j in range(8):
        a(f"v_cvt_pk_bf16_f32 v{WF+j}, v{aV+2*j}, v{aV+2*j+1}")
    a(f"s_mov_b64 exec, s[{sM0}:{sM1}]")
    a(f"ds_write_b128 v{vVSW}, v[{WF}:{WF+3}]")
    a(f"ds_write_b128 v{vVSW}, v[{WF+4}:{WF+7}] offset:1024")
    a(f"s_mov_b64 exec, -1")
    softmax_prep(a, aK)
    exps(a, aK)
    def tree_sum(base, dst, t):
        a(f"v_add_f32 v{t[0]}, v{base}, v{base+1}")
        a(f"v_add_f32 v{t[1]}, v{base+2}, v{base+3}")
        a(f"v_add_f32 v{t[2]}, v{base+4}, v{base+5}")
        a(f"v_add_f32 v{t[3]}, v{base+6}, v{base+7}")
        a(f"v_add_f32 v{t[0]}, v{t[0]}, v{base+8}")
        a(f"v_add_f32 v{t[1]}, v{t[1]}, v{base+9}")
        a(f"v_add_f32 v{t[2]}, v{t[2]}, v{base+10}")
        a(f"v_add_f32 v{t[3]}, v{t[3]}, v{base+11}")
        a(f"v_add_f32 v{t[0]}, v{t[0]}, v{base+12}")
        a(f"v_add_f32 v{t[1]}, v{t[1]}, v{base+13}")
        a(f"v_add_f32 v{t[2]}, v{t[2]}, v{t[3]}")
        a(f"v_add_f32 v{t[0]}, v{t[0]}, v{t[1]}")
        a(f"v_add_f32 v{dst}, v{t[0]}, v{t[2]}")
    tree_sum(EPL, vT0, [vT2, vT3, vT4, vT5])
    tree_sum(EMI, vT1, [vT2, vT3, vT4, vT5])
    PP, PM = WF + 8, WF + 16
    a(f"v_mov_b32 v{PP+7}, 0")
    a(f"v_mov_b32 v{PM+7}, 0")
    a(f"v_permlane32_swap_b32 v{vT0}, v{vT1}")
    a("s_nop 1")
    a(f"v_add_f32 v{vT0}, v{vT0}, v{vT1}")
    a(f"v_rcp_f32 v{vT0}, v{vT0}")
    a("s_nop 0")
    a(f"v_mov_b32 v{vT1}, v{vT0}")
    a("s_nop 1")
    a(f"v_permlane32_swap_b32 v{vT0}, v{vT1}")
    a("s_nop 1")
    for sg, (src, base, rr) in enumerate(((EPL, PP, vT0), (EMI, PM, vT1))):
        for r in range(14):
            a(f"v_mul_f32 v{src+r}, v{src+r}, v{rr}")
        for j in range(7):
            a(f"v_cvt_pk_bf16_f32 v{base+j}, v{src+2*j}, v{src+2*j+1}")
            if j % 2 == 1: a(f"ds_write_b64 v{PHA[4*sg + j//2]}, v[{base+j-1}:{base+j}]")
        a(f"ds_write_b64 v{PHA[4*sg + 3]}, v[{base+6}:{base+7}]")
    a(f"s_waitcnt vmcnt({0 if cfg.wqlate else 3}) lgkmcnt(0)")
    stamp(a, cfg, "C1pre")
    a("s_barrier")
    stamp(a, cfg, "C1end")
    a.c("================ phase C2")
    a(f"v_readfirstlane_b32 s{sTAG}, v{vEPOCH}")
    a(f"s_cmp_ge_u32 s{sWV}, 4")
    a("s_cbranch_scc1 L_c2_hi")
    BF = 96
    def c2_reads(k):
        t4, s = k >> 1, k & 1
        a(f"ds_read_b64_tr_b16 v[{WF+4*k}:{WF+4*k+1}], v{vC2A0} offset:{t4*4096 + s*2048}")
        a(f"ds_read_b64_tr_b16 v[{WF+4*k+2}:{WF+4*k+3}], v{vC2A1} offset:{t4*4096 + s*2048}")
        a(f"ds_read_b128 v[{BF+4*k}:{BF+4*k+3}], v{vC2B} offset:{k*1024}")
    for k in range(5): c2_reads(k)
    a(f"s_lshl_b32 s{sT}, s{sHP}, 4")
    a(f"s_add_u32 s{sT}, s{sT}, s{sTB}")
    a(f"s_lshl_b32 s{sT}, s{sT}, 3")
    a(f"s_lshl_b32 s{sU}, s{sWV}, 1")
    a(f"s_add_u32 s{sT}, s{sT}, s{sU}")
    a(f"s_lshl_b32 s{sT}, s{sT}, 10")
    a(f"s_add_u32 s{sT}, s{sT}, {WS_P}")
    for k in range(8):
        rem = min(5, 8 - k) - 1
        a(f"s_waitcnt lgkmcnt({3*rem})")
        a(f"v_mfma_f32_32x32x16_bf16 {vr(aK,16)}, {vr(WF+4*k,4)}, {vr(BF+4*k,4)}, {'0' if k == 0 else vr(aK,16)}")
        if k + 5 < 8: c2_reads(k + 5)
    a(f"s_lshl_b32 s{sT4}, s{sHP}, 8")
    a(f"s_lshl_b32 s{sU}, s{sTB}, 4")
    a(f"s_add_u32 s{sT4}, s{sT4}, s{sU}")
    a(f"s_lshl_b32 s{sU}, s{sWV}, 2")
    a(f"s_add_u32 s{sT4}, s{sT4}, s{sU}")
    a(f"s_add_u32 s{sT4}, s{sT4}, {WS_FLAG1}")
    a("s_nop 5")
    for j in range(8):
        a(f"v_cvt_pk_bf16_f32 v{KB+j}, v{aK+2*j}, v{aK+2*j+1}")
    a(f"buffer_store_dwordx4 v[{KB}:{KB+3}], v{vL16}, s[{SWS}:{SWS+3}], s{sT} offen sc0 sc1")
    a(f"buffer_store_dwordx4 v[{KB+4}:{KB+7}], v{vL16}, s[{SWS}:{SWS+3}], s{sT} offen offset:1024 sc0 sc1")
    a("s_branch L_c2_done")
    a.label("L_c2_hi")
    if cfg.wqlate:
        vDQ_live[0] = True
        for p in (1, 2, 3):
            wq_op(a, p)(); wq_op(a, p, partner=True)()
    issue_touch(a, cfg)
    for c in cfg.wo_c2:
        wo_op(a, c); wo_op(a, c, partner=True)
    a.label("L_c2_done")
    stamp(a, cfg, "C2end")
    a.c("================ q GEMM")
    RP = 180
    def poll_issue(soff_code):
        lab = f"L_pi{len(a.l)}"
        a(f"s_cmp_lg_u32 s{sWV}, 0")
        a(f"s_cbranch_scc1 {lab}")
        soff_code()
        a(f"v_lshlrev_b32 v{RP+1}, 2, v{vLANE}")
        a(f"buffer_load_dword v{RP}, v{RP+1}, s[{SWS}:{SWS+3}], s{sPOLL} offen sc0 sc1")
        a.label(lab)
    def poll(lab):
        a(f"s_cmp_lg_u32 s{sWV}, 0")
        a(f"s_cbranch_scc1 {lab}_done")
        a(f"s_mov_b32 s{sSPIN}, 0")
        a.label(lab)
        a("s_waitcnt vmcnt(0)")
        a(f"v_cmp_ne_u32 vcc, s{sTAG}, v{RP}")
        a(f"s_add_u32 s{sSPIN}, s{sSPIN}, 1")
        a(f"s_cmp_eq_u64 vcc, 0")
        a("s_cbranch_scc1 " + lab + "_done")
        a(f"buffer_load_dword v{RP}, v{RP+1}, s[{SWS}:{SWS+3}], s{sPOLL} offen sc0 sc1")
        a(f"s_cmp_lt_u32 s{sSPIN}, {cfg.maxspin}")
        a(f"s_cbranch_scc1 {lab}")
        a.label(lab + "_done")
    def soff1():
        a(f"s_lshl_b32 s{sPOLL}, s{sHP}, 8")
        a(f"s_add_u32 s{sPOLL}, s{sPOLL}, {WS_FLAG1}")
    a(f"s_mov_b32 s{sM0}, 0x10000000")
    a(f"s_mov_b32 s{sM1}, 0x10000000")
    a(f"s_add_u32 s{sTAG}, s{sTAG}, 1")
    QR = 5
    QPOS = [4, 5, 6, 0, 1, 2, 3]
    def q_reads(k):
        i, s = QPOS[k >> 2], k & 3
        b = WF + 4 * (k % QR)
        for u in range(2):
            a(f"ds_read_b64_tr_b16 v[{b+2*u}:{b+2*u+1}], v{vWQ} offset:{8192*i + (16*s + 4*u)*128}")
        a(f"s_mov_b64 exec, s[{sM0}:{sM1}]")
        a(f"ds_read_b128 v[{b}:{b+3}], v{vGA} offset:{i*128 + s*32}")
        a(f"s_mov_b64 exec, -1")
    MID = 16 - QR
    for k in range(QR): q_reads(k)
    wo_mid = [c for c in range(12) if c not in cfg.wo_c2 and c not in cfg.wo_late]
    sched = {}
    for n, c in enumerate(wo_mid):
        sched[MID + 1 + (n * (27 - MID - 1)) // max(1, len(wo_mid))] = c
    for k in range(28):
        rem = min(QR, 28 - k) - 1
        b = WF + 4 * (k % QR)
        xi = 4 * QPOS[k >> 2] + (k & 3)
        a(f"s_waitcnt lgkmcnt({3*rem})")
        a(f"v_mfma_f32_32x32x16_bf16 {vr(aQ,16)}, {vr(b,4)}, {vr(XF+4*xi,4)}, {'0' if k == 0 else vr(aQ,16)}")
        if k == cfg.flagstep:
            a(f"s_cmp_ge_u32 s{sWV}, 4")
            a("s_cbranch_scc1 L_noflag1")
            a(f"v_mov_b32 v{vT0}, 0")
            a(f"v_mov_b32 v{vT1}, s{sTAG}")
            a(f"s_waitcnt vmcnt(0)")
            a("s_mov_b64 exec, 1")
            a(f"buffer_store_dword v{vT1}, v{vT0}, s[{SWS}:{SWS+3}], s{sT4} offen sc0 sc1")
            a("s_mov_b64 exec, -1")
            a.label("L_noflag1")
        if k == MID:
            a(f"s_waitcnt vmcnt({1 + 2*len(cfg.wo_c2)})")
            a("s_barrier")
            stamp(a, cfg, "qmid")
        if k + QR < 28: q_reads(k + QR)
        if k in sched: wo_op(a, sched[k])
    poll_issue(soff1)
    stamp(a, cfg, "qGEMM")
    a.c("================ q features")
    a(f"s_cmp_eq_u32 s{sBR}, 0")
    a(f"s_cselect_b32 s{sU}, 0x80000000, 0")
    a("s_nop 9")
    a(f"v_mov_b32 v{vG}, v{aQ+12}")
    a(f"v_mov_b32 v{vG2}, v{aQ+12}")
    for j in range(8):
        a(f"v_cvt_pk_bf16_f32 v{KB+j}, v{aQ+2*j}, v{aQ+2*j+1}")
    a(f"v_permlane32_swap_b32 v{vG}, v{vG2}")
    a("s_nop 0")
    a(f"v_mfma_f32_32x32x16_bf16 {vr(aK,16)}, {vr(PF,4)}, {vr(KB,4)}, 0")
    a(f"v_mfma_f32_32x32x16_bf16 {vr(aK,16)}, {vr(PF+4,4)}, {vr(KB+4,4)}, {vr(aK,16)}")
    a(f"v_mul_f32 v{vG}, v{vC}, v{vG2}")
    a(f"v_xor_b32 v{vG}, s{sU}, v{vG}")
    a(f"v_exp_f32 v{vG}, v{vG}")
    a("s_nop 0")
    a(f"v_add_f32 v{vG}, 1.0, v{vG}")
    a(f"v_rcp_f32 v{vG}, v{vG}")
    a(f"v_mov_b32 v{EP+7}, 0")
    a(f"v_mov_b32 v{EM+7}, 0")
    a("s_nop 4")
    softmax_prep(a, aK)
    exps(a, aK)
    for j in range(7):
        a(f"v_cvt_pk_bf16_f32 v{EP+j}, v{EPL+2*j}, v{EPL+2*j+1}")
    for j in range(7):
        a(f"v_cvt_pk_bf16_f32 v{EM+j}, v{EMI+2*j}, v{EMI+2*j+1}")
    stamp(a, cfg, "qfeat")
    a.c("================ sync 1")
    poll("L_poll1")
    a("s_barrier")
    stamp(a, cfg, "sync1")
    a.c("================ phase 2")
    PL = XF
    a(f"s_lshl_b32 s{sT}, s{sHP}, 17")
    a(f"s_lshl_b32 s{sU}, s{sWV}, 10")
    a(f"s_add_u32 s{sT}, s{sT}, s{sU}")
    a(f"s_add_u32 s{sT}, s{sT}, {WS_P}")
    a(f"s_lshl_b32 s{sU}, s{sTB}, 13")
    for t in range(16):
        a(f"s_add_u32 s{sT2}, s{sT}, s{sU}")
        a(f"buffer_load_dwordx4 v[{PL+4*t}:{PL+4*t+3}], v{vL16}, s[{SWS}:{SWS+3}], s{sT2} offen sc0 sc1")
        if t < 15:
            a(f"s_add_u32 s{sU}, s{sU}, 8192")
            a(f"s_and_b32 s{sU}, s{sU}, 0x1ffff")
        if cfg.fair and t % cfg.fair == cfg.fair - 1 and t < 15: a("s_barrier")
    late = list(cfg.wo_late) + [12, 13]
    NWO2 = len(late)
    for c in late: wo_op(a, c)
    ACC = 16
    for j in range(8): a(f"v_mov_b32 v{ACC+j}, 0")
    a(f"s_and_b32 s{sU}, s{sWV}, 3")
    a(f"s_lshl_b32 s{sT3}, s{sTB}, 2")
    a(f"s_add_u32 s{sT3}, s{sT3}, s{sU}")
    a(f"s_lshl_b32 s{sT3}, s{sT3}, 1")
    a(f"s_add_u32 s{sT3}, s{sT3}, s{sBR}")
    a(f"s_lshl_b32 s{sT3}, s{sT3}, 4")
    a(f"s_lshl_b32 s{sU}, s{sH2}, 1")
    a(f"s_add_u32 s{sT3}, s{sT3}, s{sU}")
    a(f"s_lshr_b32 s{sU}, s{sWV}, 2")
    a(f"s_add_u32 s{sT3}, s{sT3}, s{sU}")
    a(f"s_lshl_b32 s{sT3}, s{sT3}, 11")
    a(f"s_add_u32 s{sT3}, s{sT3}, {WS_O}")
    a(f"s_lshr_b32 s{sU}, s{sWV}, 1")
    a(f"s_and_b32 s{sU}, s{sU}, 1")
    a(f"s_lshl_b32 s{sT4}, s{sTB}, 1")
    a(f"s_add_u32 s{sT4}, s{sT4}, s{sU}")
    a(f"s_lshl_b32 s{sT4}, s{sT4}, 4")
    a(f"s_add_u32 s{sT4}, s{sT4}, s{sHP}")
    a(f"s_lshl_b32 s{sT4}, s{sT4}, 4")
    a(f"s_lshr_b32 s{sU}, s{sWV}, 2")
    a(f"s_lshl_b32 s{sU}, s{sU}, 3")
    a(f"s_add_u32 s{sT4}, s{sT4}, s{sU}")
    a(f"s_and_b32 s{sU}, s{sWV}, 1")
    a(f"s_lshl_b32 s{sU}, s{sU}, 2")
    a(f"s_add_u32 s{sT4}, s{sT4}, s{sU}")
    a(f"s_add_u32 s{sT4}, s{sT4}, {WS_FLAG2}")
    a(f"s_lshl_b32 s{sU}, s{sWV}, 10")
    a(f"s_add_u32 s{sU}, s{sU}, {L_KVF}")
    a(f"v_add_u32 v{vT2}, s{sU}, v{vL16}")
    a(f"s_lshr_b32 s{sU}, s{sWV}, 2")
    a(f"s_lshl_b32 s{sU}, s{sU}, 12")
    a(f"s_add_u32 s{sU}, s{sU}, {L_KVF}")
    a(f"v_add_u32 v{vT3}, s{sU}, v{vL16}")
    a(f"v_mov_b32 v{vT4}, 0x358637bd")
    a(f"v_mov_b32 v{vT5}, s{sTAG}")
    a(f"s_mov_b32 s{sM0}, 0x88000000")
    a(f"s_mov_b32 s{sM1}, 0x88000000")
    stamp(a, cfg, "P2iss")
    for t in range(16):
        a(f"s_waitcnt vmcnt({NWO2 + 15 - t})")
        for d in range(4):
            a(f"v_dot2c_f32_bf16 v{ACC+2*d}, s{sC_LO}, v{PL+4*t+d}")
            a(f"v_dot2c_f32_bf16 v{ACC+2*d+1}, s{sC_HI}, v{PL+4*t+d}")
    stamp(a, cfg, "P2sum")
    a("s_nop 1")
    for d in range(4):
        a(f"v_cvt_pk_bf16_f32 v{24+d}, v{ACC+2*d}, v{ACC+2*d+1}")
    a(f"s_mov_b64 exec, s[{sM0}:{sM1}]")
    for d in range(4):
        a(f"v_mov_b32 v{24+d}, 0x3f803f80")
    a(f"s_mov_b64 exec, -1")
    a(f"ds_write_b128 v{vT2}, v[24:27]")
    a("s_waitcnt lgkmcnt(0)")
    a("s_barrier")
    for k in (0, 2, 1, 3):
        a(f"ds_read_b128 v[{WF+4*k}:{WF+4*k+3}], v{vT3} offset:{k*1024}")
    DP, DM = 16, 32
    a("s_waitcnt lgkmcnt(3)")
    a(f"v_mfma_f32_32x32x16_bf16 {vr(DP,16)}, {vr(WF,4)}, {vr(EP,4)}, 0")
    a("s_waitcnt lgkmcnt(2)")
    a(f"v_mfma_f32_32x32x16_bf16 {vr(DM,16)}, {vr(WF+8,4)}, {vr(EM,4)}, 0")
    a("s_waitcnt lgkmcnt(1)")
    a(f"v_mfma_f32_32x32x16_bf16 {vr(DP,16)}, {vr(WF+4,4)}, {vr(EP+4,4)}, {vr(DP,16)}")
    a("s_waitcnt lgkmcnt(0)")
    a(f"v_mfma_f32_32x32x16_bf16 {vr(DM,16)}, {vr(WF+12,4)}, {vr(EM+4,4)}, {vr(DM,16)}")
    a(f"v_mov_b32 v{KB+7}, 0")
    a(f"v_mov_b32 v{vJUNK}, 0")
    a("s_nop 9")
    a(f"v_mul_f32 v{vT1}, v{DP+14}, v{DM+15}")
    a(f"v_mul_f32 v{vT2}, v{DP+15}, v{DM+15}")
    a(f"v_fmac_f32 v{vT1}, v{DM+14}, v{DP+15}")
    a(f"v_fmac_f32 v{vT1}, v{vT2}, v{vT4}")
    a(f"v_rcp_f32 v{vT1}, v{vT1}")
    a("s_nop 0")
    a(f"v_mul_f32 v{vT1}, v{vT1}, v{vG}")
    a(f"v_mul_f32 v{vT2}, v{DM+15}, v{vT1}")
    a(f"v_mul_f32 v{vT3}, v{DP+15}, v{vT1}")
    for j in range(7):
        for r in (2*j, 2*j+1):
            a(f"v_mul_f32 v{DP+r}, v{DP+r}, v{vT2}")
        for r in (2*j, 2*j+1):
            a(f"v_fmac_f32 v{DP+r}, v{DM+r}, v{vT3}")
        a(f"v_cvt_pk_bf16_f32 v{KB+j}, v{DP+2*j}, v{DP+2*j+1}")
        if j == 3:
            a(f"buffer_store_dwordx4 v[{KB}:{KB+3}], v{vL16}, s[{SWS}:{SWS+3}], s{sT3} offen sc0 sc1")
    a(f"buffer_store_dwordx4 v[{KB+4}:{KB+7}], v{vL16}, s[{SWS}:{SWS+3}], s{sT3} offen offset:1024 sc0 sc1")
    stamp(a, cfg, "P2st")
    a("s_waitcnt vmcnt(0)")
    a("s_mov_b64 exec, 1")
    a(f"buffer_store_dword v{vT5}, v{vJUNK}, s[{SWS}:{SWS+3}], s{sT4} offen sc0 sc1")
    a("s_mov_b64 exec, -1")
    stamp(a, cfg, "P2end")
    a(f"s_cmp_ge_u32 s{sJ}, 28")
    a("s_cbranch_scc1 L_fin")
    a.c("================ phase 3")
    a("s_barrier")
    AD0, AD1, AS0, AS1 = 176, 177, 178, 179
    OF = 192
    WR = 48
    ACC3 = 16
    a(f"v_lshrrev_b32 v{vT0}, 5, v{vLANE}")
    a(f"v_and_b32 v{vT1}, 15, v{vLANE}")
    a(f"v_lshrrev_b32 v{vT2}, 2, v{vT1}")
    a(f"v_and_b32 v{vT1}, 3, v{vT1}")
    a(f"v_lshlrev_b32 v{vT1}, 3, v{vT1}")
    a(f"v_and_b32 v{vT3}, 16, v{vLANE}")
    a(f"v_lshl_add_u32 v{vT1}, v{vT3}, 1, v{vT1}")
    a(f"s_lshr_b32 s{sU}, s{sWV}, 2")
    a(f"s_mul_i32 s{sT}, s{sU}, 448")
    a(f"s_lshr_b32 s{sU}, s{sWV}, 1")
    a(f"s_and_b32 s{sU}, s{sU}, 1")
    a(f"s_mul_i32 s{sU}, s{sU}, 224")
    a(f"s_add_u32 s{sT}, s{sT}, s{sU}")
    a(f"s_mul_i32 s{sU}, s{sR2}, 28")
    a(f"s_add_u32 s{sT}, s{sT}, s{sU}")
    a(f"s_lshl_b32 s{sT}, s{sT}, 7")
    a(f"v_lshl_add_u32 v{vT3}, v{vT0}, 2, v{vT2}")
    a(f"v_lshlrev_b32 v{vT3}, 7, v{vT3}")
    a(f"v_and_b32 v{vT4}, 2, v{vT2}")
    a(f"v_lshlrev_b32 v{vT4}, 5, v{vT4}")
    a(f"v_xor_b32 v{vT5}, v{vT1}, v{vT4}")
    a(f"v_add_u32 v{vT3}, v{vT3}, v{vT5}")
    a(f"v_add_u32 v{AD0}, s{sT}, v{vT3}")
    a(f"v_xor_b32 v{AD1}, 64, v{AD0}")
    a(f"v_lshl_add_u32 v{vT3}, v{vT0}, 1, v{vT2}")
    a(f"v_add_u32 v{vT5}, 24, v{vT3}")
    a(f"v_add_u32 v{vT3}, 20, v{vT3}")
    a(f"v_cmp_gt_u32 vcc, 2, v{vT2}")
    a(f"v_lshlrev_b32 v{vT0}, 6, v{vT0}")
    a(f"v_xor_b32 v{vT4}, v{vT4}, v{vT0}")
    a(f"v_cndmask_b32 v{vT3}, v{vT3}, v{vT5}, vcc")
    a(f"v_lshlrev_b32 v{vT3}, 7, v{vT3}")
    a(f"v_xor_b32 v{vT5}, v{vT1}, v{vT4}")
    a(f"v_add_u32 v{vT3}, v{vT3}, v{vT5}")
    a(f"v_add_u32 v{AS0}, s{sT}, v{vT3}")
    a(f"v_xor_b32 v{AS1}, 64, v{AS0}")
    def wo_reads(st):
        hl, gi = st >> 1, st & 1
        if gi == 0 and hl >= 2:
            a(f"s_cmp_eq_u32 s{sR2}, {8 - hl}")
            a(f"s_cbranch_scc0 L_nowrap{hl}")
            for k in range(4):
                a(f"v_subrev_u32 v{AD0+k}, {8*3584}, v{AD0+k}")
            a.label(f"L_nowrap{hl}")
        b = WR + 8 * st
        for c2 in range(2):
            a(f"ds_read_b64_tr_b16 v[{b+4*c2}:{b+4*c2+1}], v{AD0+c2} offset:{hl*3584 + 16*gi*128}")
            if gi == 0:
                a(f"ds_read_b64_tr_b16 v[{b+4*c2+2}:{b+4*c2+3}], v{AD0+c2} offset:{hl*3584 + 8*128}")
            else:
                a(f"ds_read_b64_tr_b16 v[{b+4*c2+2}:{b+4*c2+3}], v{AS0+c2} offset:{hl*3584}")
    a(f"s_cmp_eq_u32 s{sWV}, 0")
    a("s_cbranch_scc1 L_w0_poll_first") if cfg.pollfirst else None
    def soff2():
        a(f"s_lshl_b32 s{sPOLL}, s{sT64}, 8")
        a(f"s_add_u32 s{sPOLL}, s{sPOLL}, {WS_FLAG2}")
    for st in range(16):
        wo_reads(st)
        if st == cfg.poll2at: poll_issue(soff2)
    a(f"s_lshl_b32 s{sT2}, s{sT64}, 1")
    a(f"s_and_b32 s{sU}, s{sWV}, 1")
    a(f"s_add_u32 s{sT2}, s{sT2}, s{sU}")
    a(f"s_lshl_b32 s{sT2}, s{sT2}, 1")
    a(f"s_lshr_b32 s{sU}, s{sWV}, 2")
    a(f"s_add_u32 s{sT2}, s{sT2}, s{sU}")
    a(f"s_lshl_b32 s{sT2}, s{sT2}, 15")
    a(f"s_lshr_b32 s{sU}, s{sWV}, 1")
    a(f"s_and_b32 s{sU}, s{sU}, 1")
    a(f"s_lshl_b32 s{sU}, s{sU}, 14")
    a(f"s_add_u32 s{sT2}, s{sT2}, s{sU}")
    a(f"s_add_u32 s{sT2}, s{sT2}, {WS_O}")
    a(f"s_and_b32 s{sU}, s{sWV}, 1")
    a(f"s_lshl_b32 s{sU}, s{sU}, 15")
    a(f"s_lshr_b32 s{sT4}, s{sWV}, 1")
    a(f"s_lshl_b32 s{sT3}, s{sT4}, 11")
    a(f"s_add_u32 s{sT3}, s{sT3}, s{sU}")
    a(f"v_add_u32 v{vT2}, s{sT3}, v{vL16}")
    a(f"s_lshl_b32 s{sT3}, s{sT4}, 13")
    a(f"s_add_u32 s{sT3}, s{sT3}, s{sU}")
    a(f"v_add_u32 v{vT4}, s{sT3}, v{vL16}")
    a(f"s_lshl_b32 s{sT3}, s{sT64}, 1")
    a(f"s_and_b32 s{sU}, s{sWV}, 1")
    a(f"s_add_u32 s{sT3}, s{sT3}, s{sU}")
    a(f"s_mul_i32 s{sT3}, s{sT3}, {32*896}")
    a(f"s_add_u32 s{sT3}, s{sT3}, s{sCT}")
    a(f"s_lshl_b32 s{sU}, s{sT4}, 5")
    a(f"s_add_u32 s{sT3}, s{sT3}, s{sU}")
    a(f"v_and_b32 v{vT3}, 31, v{vLANE}")
    a(f"v_mul_u32_u24 v{vT3}, 896, v{vT3}")
    a(f"v_lshrrev_b32 v{vT5}, 5, v{vLANE}")
    a(f"v_lshl_add_u32 v{vT3}, v{vT5}, 4, v{vT3}")
    stamp(a, cfg, "woiss")
    poll("L_poll2")
    a("s_waitcnt lgkmcnt(0)")
    stamp(a, cfg, "sync2pre")
    a("s_barrier")
    stamp(a, cfg, "sync2")
    a(f"s_lshl_b32 s{sU}, s{sR2}, 11")
    for st in range(16):
        a(f"s_add_u32 s{sT}, s{sT2}, s{sU}")
        a(f"buffer_load_dwordx4 v[{OF+4*st}:{OF+4*st+3}], v{vL16}, s[{SWS}:{SWS+3}], s{sT} offen sc0 sc1")
        if st < 15:
            a(f"s_add_u32 s{sU}, s{sU}, 1024")
            a(f"s_and_b32 s{sU}, s{sU}, 0x3fff")
        if cfg.fair3 and st % cfg.fair3 == cfg.fair3 - 1 and st < 15: a("s_barrier")
    stamp(a, cfg, "P3iss")
    for st in range(16):
        b = WR + 8 * st
        a(f"s_waitcnt vmcnt({15-st})")
        for c2 in range(2):
            a(f"v_mfma_f32_32x32x16_bf16 {vr(ACC3+16*c2,16)}, {vr(b+4*c2,4)}, {vr(OF+4*st,4)}, {'0' if st == 0 else vr(ACC3+16*c2,16)}")
    stamp(a, cfg, "P3mfma")
    a(f"s_cmp_eq_u32 s{sT4}, 0"); a("s_cbranch_scc1 L_rs0")
    a(f"s_cmp_eq_u32 s{sT4}, 1"); a("s_cbranch_scc1 L_rs1")
    a(f"s_cmp_eq_u32 s{sT4}, 2"); a("s_cbranch_scc1 L_rs2")
    for kq in (3, 0, 1, 2):
        if kq != 3: a.label(f"L_rs{kq}")
        a("s_nop 9")
        for q in range(4):
            if q == kq: continue
            r0 = ACC3 + 8 * q
            a(f"ds_write_b128 v{vT2}, v[{r0}:{r0+3}] offset:{q*8192}")
            a(f"ds_write_b128 v{vT2}, v[{r0+4}:{r0+7}] offset:{q*8192+1024}")
        a("s_waitcnt lgkmcnt(0)")
        if kq != 0:
            for j in range(8): a(f"v_mov_b32 v{ACC3+j}, v{ACC3+8*kq+j}")
        a("s_barrier")
        k = 0
        for src in range(4):
            if src == kq: continue
            a(f"ds_read_b128 v[{48+8*k}:{48+8*k+3}], v{vT4} offset:{src*2048}")
            a(f"ds_read_b128 v[{48+8*k+4}:{48+8*k+7}], v{vT4} offset:{src*2048+1024}")
            k += 1
        if kq != 2: a("s_branch L_rsdone")
    a.label("L_rsdone")
    a("s_waitcnt lgkmcnt(4)")
    for j in range(8): a(f"v_add_f32 v{ACC3+j}, v{ACC3+j}, v{48+j}")
    a("s_waitcnt lgkmcnt(2)")
    for j in range(8): a(f"v_add_f32 v{ACC3+j}, v{ACC3+j}, v{56+j}")
    a("s_waitcnt lgkmcnt(0)")
    for j in range(8): a(f"v_add_f32 v{ACC3+j}, v{ACC3+j}, v{64+j}")
    for j in range(4):
        a(f"v_cvt_pk_bf16_f32 v{40+j}, v{ACC3+2*j}, v{ACC3+2*j+1}")
    a("s_nop 1")
    a(f"v_permlane32_swap_b32 v40, v42")
    a(f"v_permlane32_swap_b32 v41, v43")
    a("s_nop 1")
    a(f"buffer_store_dwordx4 v[40:43], v{vT3}, s[{SOUT}:{SOUT+3}], s{sT3} offen")
    a(f"s_or_b32 s{sT}, s2, s{sWV}")
    a(f"s_cmp_lg_u32 s{sT}, 0")
    a("s_cbranch_scc1 L_fin")
    a(f"v_mov_b32 v{vT1}, {WS_EPOCH}")
    a(f"v_mov_b32 v{vT2}, s{sTAG}")
    a("s_mov_b64 exec, 1")
    a(f"buffer_store_dword v{vT2}, v{vT1}, s[{SWS}:{SWS+3}], 0 offen sc0 sc1")
    a("s_mov_b64 exec, -1")
    a.label("L_fin")
    if cfg.prof:
        stamp(a, cfg, "fin")
        a("s_waitcnt vmcnt(0)")
        stamp(a, cfg, "end")
        a("s_memrealtime s[98:99]")
        a("s_waitcnt lgkmcnt(0)")
        a(f"v_writelane_b32 v{vPROF}, s98, 62")
        a(f"s_lshl_b32 s{sT}, s2, 3")
        a(f"s_add_u32 s{sT}, s{sT}, s{sWV}")
        a(f"s_lshl_b32 s{sT}, s{sT}, 8")
        a(f"s_add_u32 s{sT}, s{sT}, {WS_PROF}")
        a(f"v_lshlrev_b32 v{vT0}, 2, v{vLANE}")
        a(f"buffer_store_dword v{vPROF}, v{vT0}, s[{SWS}:{SWS+3}], s{sT} offen")
        open(cfg.o + ".stamps", "w").write("\n".join(STAMPS))
    a.label("L_exit")
    a("s_endpgm")
    a.label("L_end")
    return a

def wrap(a, cfg):
    hdr = open("gated_mix__linear_kernel_hedgehog__linear_kernel_hedgehog__prompt.s.ref").read().split("\n")
    out = []
    for ln in hdr:
        if ln.startswith("; @launch"):
            out.append("; @launch grid=(256,1,1) block=(512,1,1) lds=163840")
        elif ln.startswith(";"):
            out.append(ln)
        else:
            break
    out += ['.amdgcn_target "amdgcn-amd-amdhsa--gfx950"', ".text", f".globl {KNAME}", ".p2align 8", f".type {KNAME},@function",
            ".set CODE_KB_LEFT, ((L_end - L_pc) / 1024) - 1", a.text(),
            '.section .rodata,"a"', ".p2align 6", f".amdhsa_kernel {KNAME}",
            "  .amdhsa_next_free_vgpr 256", "  .amdhsa_next_free_sgpr 102", "  .amdhsa_accum_offset 256",
            "  .amdhsa_group_segment_fixed_size 0", "  .amdhsa_kernarg_size 96", "  .amdhsa_user_sgpr_count 2",
            "  .amdhsa_user_sgpr_kernarg_segment_ptr 1", "  .amdhsa_system_sgpr_workgroup_id_x 1", ".end_amdhsa_kernel"]
    return "\n".join(out) + "\n"

if __name__ == "__main__":
    ap = argparse.ArgumentParser()
    ap.add_argument("--prof", action="store_true")
    ap.add_argument("--flagstep", type=int, default=6)
    ap.add_argument("--fair", type=int, default=4)
    ap.add_argument("--fair3", type=int, default=0)
    ap.add_argument("--wolate", default="")
    ap.add_argument("--woc2", default="6,7,8,9,10,11")
    ap.add_argument("--maxspin", type=int, default=200000)
    ap.add_argument("--sleep", type=int, default=0)
    ap.add_argument("--pollfirst", action="store_true")
    ap.add_argument("--poll2at", type=int, default=8)
    ap.add_argument("--wqlate", action="store_true")
    ap.add_argument("--pp", type=int, default=0)
    ap.add_argument("--exp", default="")
    ap.add_argument("--nopf", action="store_true")
    ap.add_argument("-o", default="k.s")
    cfg = ap.parse_args()
    cfg.wo_c2 = [int(x) for x in cfg.woc2.split(",") if x]
    cfg.wo_late = [int(x) for x in cfg.wolate.split(",") if x]
    a = gen(cfg)
    a.l = [x for x in a.l if x is not None]
    txt = wrap(a, cfg)
    open(cfg.o, "w").write(txt)
    import hazard
    errs = hazard.check(a.text())
    for e in errs: print("HAZARD", e)
    print("wrote", cfg.o, len(txt), "bytes;", len(errs), "hazards")
```

```python
import sys, argparse
KNAME = "gated_mix__linear_kernel_hedgehog__linear_kernel_hedgehog__prompt_kernel"

class A:
    def __init__(self): self.l = []
    def __call__(self, s): self.l.append("    " + s)
    def label(self, s): self.l.append(s + ":")
    def c(self, s): self.l.append("    ; " + s)
    def text(self): return "\n".join(self.l) + "\n"

def vr(b, n=1): return f"v{b}" if n == 1 else f"v[{b}:{b+n-1}]"

XBYTES = 2048 * 448 * 2
WBYTES = 448 * 1344 * 2
WOBYTES = 448 * 448 * 2
PHIBYTES = 16 * 28 * 28 * 2
WS_FLAG1 = 0x0
WS_FLAG2 = 0x1000
WS_EPOCH = 0x4000
WS_P = 0x100000
WS_O = 0x300000
WS_PROF = 0x780000
WS_SIZE = 0x800000
S0, S1, S2, S3 = 0, 32768, 65536, 98304
LM = 131072
L_WQ = S3
L_PHI = 155648
L_GATE = 159744
L_PHIS = S0
L_VS = S1
L_KVF = LM
LOG2E = 0x3FB8AA3B
CH_W = 64 * 2688

s_AX, s_AW, s_APHI, s_AWO, s_BX, s_BW, s_BPHI, s_BWO = 4, 6, 8, 10, 12, 14, 16, 18
s_GATE, s_OUT, s_DBG, s_WS = 20, 22, 24, 26
SX, SW, SWS, SOA, SOB, SOUT, SMI = 28, 32, 36, 40, 44, 48, 52
sWV, sTB, sBR, sH2, sHP, sC0, sWRAP = 56, 57, 58, 59, 60, 61, 62
sXo, sWo, sT, sU, sLdsX, sLdsW = 63, 64, 65, 66, 67, 68
sTAG, sJ = 69, 70
sLdsWp, sWOBp = 71, 72
sM0, sM1 = 74, 75
sT2, sT3, sT4 = 76, 77, 78
sC_LO, sC_HI = 79, 80
sT64, sCT = 81, 82
sSPIN = 83
sEX0 = 84
sR2, sX8 = 88, 89
sA, sB = 90, 91
sWOB = 93
sK128, sKCH = 94, 95
sPOLL = 96
sQ = [4, 5, 6, 7, 12, 13, 14]

vLANE, vVSW, vC, vDO = 1, 2, 3, 4
vT0, vT1, vT2, vT3, vT4, vT5 = 5, 6, 7, 8, 9, 10
vG2, vEPOCH, vJUNK, vL16, vPROF = 11, 12, 13, 14, 15
aK, aV, aQ = 16, 32, 32
WF, PF, KB = 48, 80, 88
EPL, EMI = 96, 110
EP, EM = 124, 132
PHA = [124, 125, 126, 127, 136, 137, 138, 139]
vC2A0, vC2A1, vC2B = 128, 129, 130
CONST4 = 132
vG, vGA, vWQ, vPHW = 140, 141, 142, 143
XF = 144
vXA, vXB = 96, 100
vWA, vWB = 104, 105
vDX0, vDX1, vDW = 106, 107, 108
vDQ = 131

STAMPS = []
DBGSEL = ["start", "kernarg", "chunk0", "chunk3", "Bend", "C1end", "flag1", "qGEMM", "sync1", "P2sum", "P2end", "sync2", "P3mfma", "fin", "end"]
def stamp(a, cfg, name):
    if getattr(cfg, "dbg", False):
        if name in DBGSEL:
            a(f"s_memtime s[100:101]")
            a("s_waitcnt lgkmcnt(0)")
            a(f"v_writelane_b32 v{vPROF}, s100, {DBGSEL.index(name)}")
        return
    if cfg.prof:
        if name not in STAMPS: STAMPS.append(name)
        idx = STAMPS.index(name)
        a(f"s_memtime s[100:101]")
        a("s_waitcnt lgkmcnt(0)")
        a(f"v_writelane_b32 v{vPROF}, s100, {idx}")

def srd(a, d, base, size):
    a(f"s_mov_b32 s{d}, s{base}")
    a(f"s_mov_b32 s{d+1}, s{base+1}")
    a(f"s_mov_b32 s{d+2}, {size}")
    a(f"s_mov_b32 s{d+3}, 0x00020000")

def kv_ops(a, pos):
    base = (pos % 4) * 32768
    def x0():
        a(f"s_add_u32 m0, s{sLdsX}, {base}")
        a(f"s_cmp_eq_u32 s{sWRAP}, {pos + 1}")
        a(f"buffer_load_dwordx4 v{vDX0}, s[{SX}:{SX+3}], s{sXo} offen lds")
        a(f"s_cselect_b32 s{sT2}, {(128 - 896) & 0xffffffff:#x}, s{sK128}")
        a(f"s_cselect_b32 s{sT3}, {(CH_W - 7*CH_W) & 0xffffffff:#x}, s{sKCH}")
    def x1():
        a(f"s_add_u32 m0, s{sLdsX}, {base + 1024}")
        a(f"s_sub_u32 s{sQ[pos]}, s{sWo}, 896")
        a(f"buffer_load_dwordx4 v{vDX1}, s[{SX}:{SX+3}], s{sXo} offen lds")
        a(f"s_add_u32 s{sXo}, s{sXo}, s{sT2}")
    def wk():
        a(f"s_add_u32 m0, s{sLdsW}, {base + 16384}")
        a(f"s_add_u32 s{sT}, s{sWo}, 896")
        a(f"buffer_load_dwordx4 v{vDW}, s[{SW}:{SW+3}], s{sWo} offen lds")
    def wv():
        a(f"s_add_u32 m0, s{sLdsW}, {base + 16384 + 8192}")
        a(f"s_add_u32 s{sWo}, s{sWo}, s{sT3}")
        a(f"buffer_load_dwordx4 v{vDW}, s[{SW}:{SW+3}], s{sT} offen lds")
    return [x0, x1, wk, wv]

def wq_op(a, pos, partner=False):
    def f():
        a(f"s_add_u32 m0, s{sLdsWp if partner else sLdsW}, {L_WQ + 8192*pos}")
        if partner:
            a(f"s_sub_u32 s{sT}, s{sQ[pos]}, {4*8*2688}")
            a(f"buffer_load_dwordx4 v{vDQ}, s[{SW}:{SW+3}], s{sT} offen lds")
        else:
            a("s_nop 0")
            a(f"buffer_load_dwordx4 v{vDQ if vDQ_live[0] else vDW}, s[{SW}:{SW+3}], s{sQ[pos]} offen lds")
    return f
vDQ_live = [False]

def wo_op(a, c, partner=False):
    a(f"s_add_u32 m0, s{sLdsWp if partner else sLdsW}, {c*8192}")
    a(f"s_add_u32 s{sT}, s{sWOBp if partner else sWOB}, {(c % 7) * 8 * 8 * 896}")
    S = SOA if c < 7 else SOB
    a(f"buffer_load_dwordx4 v{vDO}, s[{S}:{S+3}], s{sT} offen lds")

def issue_misc(a):
    a(f"s_cmp_ge_u32 s{sWV}, 4")
    a(f"s_cbranch_scc1 L_gate_dma")
    a(f"s_cmp_eq_u32 s{sBR}, 0")
    a(f"s_cselect_b32 s{SMI}, s{s_APHI}, s{s_BPHI}")
    a(f"s_cselect_b32 s{SMI+1}, s{s_APHI+1}, s{s_BPHI+1}")
    a(f"s_mov_b32 s{SMI+2}, {PHIBYTES}")
    a(f"s_mov_b32 s{SMI+3}, 0x00020000")
    a(f"s_mul_i32 s{sT}, s{sH2}, {2*1568}")
    a(f"s_lshl_b32 s{sU}, s{sWV}, 10")
    a(f"s_add_u32 s{sT}, s{sT}, s{sU}")
    a(f"s_add_u32 m0, s{sU}, {L_PHI}")
    a("s_nop 0")
    a(f"buffer_load_dwordx4 v{vL16}, s[{SMI}:{SMI+3}], s{sT} offen lds")
    a(f"s_branch L_gate_done")
    a.label(f"L_gate_dma")
    a(f"s_mov_b32 s{SMI}, s{s_GATE}")
    a(f"s_mov_b32 s{SMI+1}, s{s_GATE+1}")
    a(f"s_mov_b32 s{SMI+2}, 896")
    a(f"s_mov_b32 s{SMI+3}, 0x00020000")
    a(f"s_and_b32 s{sU}, s{sWV}, 1")
    a(f"s_mul_i32 s{sU}, s{sU}, 896")
    a(f"s_add_u32 m0, s{sU}, {L_GATE}")
    a(f"s_mov_b32 exec_lo, -1")
    a(f"s_mov_b32 exec_hi, 0x00ffffff")
    a(f"buffer_load_dwordx4 v{vL16}, s[{SMI}:{SMI+3}], 0 offen lds")
    a(f"s_mov_b64 exec, -1")
    a.label(f"L_gate_done")

def issue_epoch(a, cfg):
    a(f"v_lshlrev_b32 v{vJUNK}, 21, v{vLANE}")
    a(f"v_min_u32 v{vJUNK}, 0x600000, v{vJUNK}")
    a(f"v_add_u32 v{vJUNK}, {WS_EPOCH}, v{vJUNK}")
    a(f"buffer_load_dword v{vEPOCH}, v{vJUNK}, s[{SWS}:{SWS+3}], 0 offen sc0 sc1")

def issue_touch(a, cfg):
    a(f"v_lshlrev_b32 v{vT3}, 17, v{vLANE}")
    a(f"s_and_b32 s{sT}, s{sWV}, 3")
    a(f"s_cmp_eq_u32 s{sT}, 1")
    a(f"s_cselect_b32 s{SMI}, s{s_AWO}, s{s_OUT}")
    a(f"s_cselect_b32 s{SMI+1}, s{s_AWO+1}, s{s_OUT+1}")
    a(f"s_cmp_eq_u32 s{sT}, 2")
    a(f"s_cselect_b32 s{SMI}, s{s_BWO}, s{SMI}")
    a(f"s_cselect_b32 s{SMI+1}, s{s_BWO+1}, s{SMI+1}")
    a(f"s_mov_b32 s{SMI+2}, {WOBYTES}")
    a(f"s_mov_b32 s{SMI+3}, 0x00020000")
    a(f"buffer_load_dword v0, v{vT3}, s[{SMI}:{SMI+3}], 0 offen")

def split_parts(fn, n):
    t = A(); fn(t)
    groups = []; cur = []
    for ln in t.l:
        cur.append(ln)
        if not ln.strip().startswith("v_cmp") and "s_nop" not in ln:
            groups.append(cur); cur = []
    if cur: groups.append(cur)
    parts = [[] for _ in range(n)]
    for k, g in enumerate(groups): parts[min(n - 1, k * n // len(groups))] += g
    return parts

def setup(a, cfg):
    a(f"v_lshlrev_b32 v{vL16}, 4, v{vLANE}")
    a(f"v_and_b32 v{vT0}, 31, v{vLANE}")
    a(f"v_lshrrev_b32 v{vT1}, 5, v{vLANE}")
    a(f"v_lshrrev_b32 v{vT2}, 1, v{vT0}")
    a(f"v_and_b32 v{vT2}, 7, v{vT2}")
    a(f"v_xor_b32 v{vT2}, v{vT2}, v{vT1}")
    a(f"v_lshlrev_b32 v{vT2}, 4, v{vT2}")
    a(f"s_and_b32 s{sA}, s{sWV}, 3")
    a(f"s_lshl_b32 s{sA}, s{sA}, 12")
    a(f"v_lshlrev_b32 v{vT3}, 7, v{vT0}")
    a(f"v_add_u32 v{vT3}, s{sA}, v{vT3}")
    a(f"v_add_u32 v{vT3}, v{vT3}, v{vT2}")
    for s in range(4):
        a(f"v_xor_b32 v{vXA+s}, {32*s}, v{vT3}")
        a(f"v_add_u32 v{vXB+s}, 65536, v{vXA+s}")
    a(f"v_and_b32 v{vT2}, 15, v{vLANE}")
    a(f"v_lshrrev_b32 v{vT3}, 2, v{vT2}")
    a(f"v_and_b32 v{vT2}, 3, v{vT2}")
    a(f"v_lshlrev_b32 v{vT2}, 3, v{vT2}")
    a(f"v_and_b32 v{vT4}, 16, v{vLANE}")
    a(f"v_lshlrev_b32 v{vT4}, 1, v{vT4}")
    a(f"v_add_u32 v{vT2}, v{vT2}, v{vT4}")
    a(f"s_lshr_b32 s{sA}, s{sWV}, 2")
    a(f"s_mul_i32 s{sB}, s{sA}, 56")
    a(f"v_add_u32 v{vT2}, s{sB}, v{vT2}")
    a(f"v_and_b32 v{vT4}, 2, v{vT3}")
    a(f"v_lshlrev_b32 v{vT4}, 5, v{vT4}")
    a(f"v_xor_b32 v{vT2}, v{vT2}, v{vT4}")
    a(f"v_lshlrev_b32 v{vT4}, 3, v{vT1}")
    a(f"v_add_u32 v{vT4}, v{vT4}, v{vT3}")
    a(f"v_lshlrev_b32 v{vT4}, 7, v{vT4}")
    a(f"v_add_u32 v{vWA}, v{vT4}, v{vT2}")
    a(f"v_add_u32 v{vWB}, 65536, v{vWA}")
    a(f"v_add_u32 v{vWQ}, {L_WQ}, v{vWA}")
    a(f"s_lshl_b32 s{sB}, s{sC0}, 7")
    a(f"s_add_u32 s{sB}, s{sB}, {L_GATE}")
    a(f"v_lshlrev_b32 v{vGA}, 4, v{vT1}")
    a(f"v_add_u32 v{vGA}, s{sB}, v{vGA}")
    a(f"v_and_b32 v{vT2}, 5, v{vT0}")
    a(f"v_and_b32 v{vT3}, 2, v{vT0}")
    a(f"v_lshlrev_b32 v{vT3}, 2, v{vT3}")
    a(f"v_or_b32 v{vT2}, v{vT2}, v{vT3}")
    a(f"v_and_b32 v{vT3}, 8, v{vT0}")
    a(f"v_lshrrev_b32 v{vT3}, 2, v{vT3}")
    a(f"v_or_b32 v{vT2}, v{vT2}, v{vT3}")
    a(f"v_xor_b32 v{vT2}, v{vT2}, v{vT1}")
    a(f"v_lshlrev_b32 v{vT2}, 3, v{vT2}")
    a(f"v_lshlrev_b32 v{vT3}, 7, v{vT0}")
    a(f"v_add_u32 v{vT2}, v{vT2}, v{vT3}")
    a(f"s_and_b32 s{sB}, s{sWV}, 3")
    a(f"s_lshl_b32 s{sB}, s{sB}, 12")
    a(f"s_lshl_b32 s{sA}, s{sA}, 14")
    a(f"s_add_u32 s{sB}, s{sB}, s{sA}")
    a(f"s_add_u32 s{sB}, s{sB}, {L_PHIS}")
    a(f"v_add_u32 v{vPHW}, s{sB}, v{vT2}")
    for sg in range(2):
        for i4 in range(4):
            a(f"v_xor_b32 v{PHA[4*sg+i4]}, {((8*sg + 2*i4) << 3)}, v{vPHW}")
    a(f"v_add_u32 v{vT2}, 2, v{vT0}")
    a(f"v_subrev_u32 v{vT3}, 2, v{vT0}")
    a(f"v_mov_b32 v{vT4}, v{vT0}")
    a(f"v_cmp_lt_u32 vcc, 25, v{vT0}")
    a("s_nop 1")
    a(f"v_cndmask_b32 v{vT4}, v{vT4}, v{vT2}, vcc")
    a(f"v_cmp_lt_u32 vcc, 27, v{vT0}")
    a("s_nop 1")
    a(f"v_cndmask_b32 v{vT4}, v{vT4}, v{vT3}, vcc")
    a(f"v_cmp_lt_u32 vcc, 29, v{vT0}")
    a("s_nop 1")
    a(f"v_cndmask_b32 v{vT4}, v{vT4}, v{vT0}, vcc")
    a(f"v_lshlrev_b32 v{vT2}, 5, v{vT1}")
    a(f"v_add_u32 v{vT4}, v{vT4}, v{vT2}")
    a(f"v_lshlrev_b32 v{vT4}, 4, v{vT4}")
    a(f"s_lshl_b32 s{sB}, s{sWV}, 11")
    a(f"s_add_u32 s{sB}, s{sB}, {L_VS}")
    a(f"v_add_u32 v{vVSW}, s{sB}, v{vT4}")
    a(f"v_and_b32 v{vT2}, 1, v{vT0}")
    a(f"v_subrev_u32 v{vT2}, 1, v{vT2}")
    a(f"v_and_b32 v{CONST4}, 0x3f803f80, v{vT2}")
    for i in range(1, 4): a(f"v_mov_b32 v{CONST4+i}, v{CONST4}")
    a(f"v_mov_b32 v{vC}, {LOG2E:#x}")
    a(f"v_mov_b32 v{vDQ}, v{vDW}")
    a(f"v_and_b32 v{vT0}, 15, v{vLANE}")
    a(f"v_lshrrev_b32 v{vT2}, 2, v{vT0}")
    a(f"v_and_b32 v{vT0}, 3, v{vT0}")
    a(f"v_and_b32 v{vT3}, 16, v{vLANE}")
    a(f"v_lshrrev_b32 v{vT3}, 2, v{vT3}")
    a(f"v_add_u32 v{vT0}, v{vT0}, v{vT3}")
    a(f"s_and_b32 s{sA}, s{sWV}, 1")
    a(f"s_lshl_b32 s{sA}, s{sA}, 3")
    a(f"v_add_u32 v{vT0}, s{sA}, v{vT0}")
    a(f"v_lshlrev_b32 v{vT3}, 2, v{vT1}")
    a(f"v_add_u32 v{vT2}, v{vT2}, v{vT3}")
    a(f"v_and_b32 v{vT3}, 5, v{vT2}")
    a(f"v_and_b32 v{vT4}, 2, v{vT2}")
    a(f"v_lshlrev_b32 v{vT4}, 2, v{vT4}")
    a(f"v_or_b32 v{vT3}, v{vT3}, v{vT4}")
    a(f"v_xor_b32 v{vT3}, v{vT3}, v{vT0}")
    a(f"v_lshlrev_b32 v{vT3}, 3, v{vT3}")
    a(f"v_lshlrev_b32 v{vT4}, 7, v{vT2}")
    a(f"v_add_u32 v{vT3}, v{vT3}, v{vT4}")
    a(f"s_lshr_b32 s{sA}, s{sWV}, 1")
    a(f"s_and_b32 s{sA}, s{sA}, 1")
    a(f"s_lshl_b32 s{sB}, s{sA}, 14")
    a(f"s_add_u32 s{sB}, s{sB}, {L_PHIS}")
    a(f"v_add_u32 v{vC2A0}, s{sB}, v{vT3}")
    a(f"v_xor_b32 v{vC2A1}, 16, v{vC2A0}")
    a(f"v_add_u32 v{vC2A1}, 1024, v{vC2A1}")
    a(f"s_lshl_b32 s{sA}, s{sA}, 13")
    a(f"s_add_u32 s{sA}, s{sA}, {L_VS}")
    a(f"v_add_u32 v{vC2B}, s{sA}, v{vL16}")
    a(f"v_lshrrev_b32 v{vT0}, 3, v{vLANE}")
    a(f"v_and_b32 v{vT1}, 7, v{vLANE}")
    a(f"v_and_b32 v{vT2}, 2, v{vT0}")
    a(f"v_lshlrev_b32 v{vT3}, 1, v{vT2}")
    a(f"v_xor_b32 v{vT3}, v{vT1}, v{vT3}")
    a(f"v_lshlrev_b32 v{vT3}, 4, v{vT3}")
    a(f"v_mul_u32_u24 v{vT4}, 896, v{vT0}")
    a(f"v_add_u32 v{vDO}, v{vT4}, v{vT3}")
    a(f"s_min_u32 s{sA}, s{sJ}, 27")
    a(f"s_mul_i32 s{sB}, s{sA}, 37")
    a(f"s_lshr_b32 s{sB}, s{sB}, 8")
    a(f"s_lshl_b32 s{sT64}, s{sX8}, 2")
    a(f"s_add_u32 s{sT64}, s{sT64}, s{sB}")
    a(f"s_mul_i32 s{sB}, s{sB}, 7")
    a(f"s_sub_u32 s{sR2}, s{sA}, s{sB}")
    a(f"s_lshl_b32 s{sCT}, s{sR2}, 7")
    a(f"s_mul_i32 s{sWOB}, s{sWV}, {8*896}")
    a(f"s_add_u32 s{sWOB}, s{sWOB}, s{sCT}")
    a(f"s_sub_u32 s{sWOBp}, s{sWOB}, {4*8*896}")
    a(f"s_sub_u32 s{sLdsWp}, s{sLdsW}, 4096")
    a(f"s_mov_b32 s{sC_LO}, 0x00003f80")
    a(f"s_mov_b32 s{sC_HI}, 0x3f800000")

def softmax_prep(a, P):
    a(f"v_max3_f32 v{vT2}, v{P}, v{P+1}, v{P+2}")
    a(f"v_min3_f32 v{vT1}, v{P}, v{P+1}, v{P+2}")
    a(f"v_max3_f32 v{vT3}, v{P+3}, v{P+4}, v{P+5}")
    a(f"v_min3_f32 v{vG2}, v{P+3}, v{P+4}, v{P+5}")
    a(f"v_max3_f32 v{vT4}, v{P+6}, v{P+7}, v{P+8}")
    a(f"v_min3_f32 v{vJUNK}, v{P+6}, v{P+7}, v{P+8}")
    a(f"v_max3_f32 v{vT5}, v{P+9}, v{P+10}, v{P+11}")
    a(f"v_min3_f32 v{vT0}, v{P+9}, v{P+10}, v{P+11}")
    a(f"v_max3_f32 v{vT2}, v{P+12}, v{P+13}, v{vT2}")
    a(f"v_min3_f32 v{vT1}, v{P+12}, v{P+13}, v{vT1}")
    a(f"v_max3_f32 v{vT3}, v{vT3}, v{vT4}, v{vT5}")
    a(f"v_min3_f32 v{vG2}, v{vG2}, v{vJUNK}, v{vT0}")
    a(f"v_max_f32 v{vT0}, v{vT2}, v{vT3}")
    a(f"v_min_f32 v{vT1}, v{vT1}, v{vG2}")
    a(f"v_mul_f32_e64 v{vT0}, -v{vC}, v{vT0}")
    a(f"v_mul_f32 v{vT1}, v{vC}, v{vT1}")
    a("s_nop 1")
    a(f"v_permlane32_swap_b32 v{vT0}, v{vT1}")
    a("s_nop 1")
    a(f"v_min_f32 v{vT0}, v{vT0}, v{vT1}")
    a(f"v_mov_b32 v{vT1}, v{vT0}")
    a("s_nop 1")
    a(f"v_permlane32_swap_b32 v{vT0}, v{vT1}")
    a("s_nop 1")

def exps(a, P):
    for r in range(14):
        a(f"v_fma_f32 v{EPL+r}, v{P+r}, v{vC}, v{vT0}")
        a(f"v_fma_f32 v{EMI+r}, v{P+r}, -v{vC}, v{vT1}")
    for r in range(14):
        a(f"v_exp_f32 v{EPL+r}, v{EPL+r}")
    for r in range(14):
        a(f"v_exp_f32 v{EMI+r}, v{EMI+r}")

def q_features(a, cfg):
    a(f"s_cmp_eq_u32 s{sBR}, 0")
    a(f"s_cselect_b32 s{sA}, 0x80000000, 0")
    a("s_nop 9")
    a(f"v_mov_b32 v{vG}, v{aQ+12}")
    a(f"v_mov_b32 v{vG2}, v{aQ+12}")
    for j in range(8):
        a(f"v_cvt_pk_bf16_f32 v{KB+j}, v{aQ+2*j}, v{aQ+2*j+1}")
    a(f"v_permlane32_swap_b32 v{vG}, v{vG2}")
    a("s_nop 0")
    a(f"v_mfma_f32_32x32x16_bf16 {vr(aK,16)}, {vr(PF,4)}, {vr(KB,4)}, 0")
    a(f"v_mfma_f32_32x32x16_bf16 {vr(aK,16)}, {vr(PF+4,4)}, {vr(KB+4,4)}, {vr(aK,16)}")
    a(f"v_mul_f32 v{vG}, v{vC}, v{vG2}")
    a(f"v_xor_b32 v{vG}, s{sA}, v{vG}")
    a(f"v_exp_f32 v{vG}, v{vG}")
    a("s_nop 0")
    a(f"v_add_f32 v{vG}, 1.0, v{vG}")
    a(f"v_rcp_f32 v{vG}, v{vG}")
    a(f"v_mov_b32 v{EP+7}, 0")
    a(f"v_mov_b32 v{EM+7}, 0")
    a("s_nop 4")
    softmax_prep(a, aK)
    exps(a, aK)
    for j in range(7):
        a(f"v_cvt_pk_bf16_f32 v{EP+j}, v{EPL+2*j}, v{EPL+2*j+1}")
    for j in range(7):
        a(f"v_cvt_pk_bf16_f32 v{EM+j}, v{EMI+2*j}, v{EMI+2*j+1}")

def pf_frags(a):
    a.c("w_phi^T fragments")
    a(f"v_and_b32 v{vT0}, 15, v{vLANE}")
    a(f"v_lshrrev_b32 v{vT1}, 2, v{vT0}")
    a(f"v_and_b32 v{vT0}, 3, v{vT0}")
    a(f"v_and_b32 v{vT2}, 16, v{vLANE}")
    a(f"v_lshrrev_b32 v{vT2}, 2, v{vT2}")
    a(f"v_add_u32 v{vT0}, v{vT0}, v{vT2}")
    a(f"v_min_u32 v{vT0}, 6, v{vT0}")
    a(f"v_lshlrev_b32 v{vT0}, 3, v{vT0}")
    a(f"v_lshrrev_b32 v{vT2}, 5, v{vLANE}")
    a(f"v_lshlrev_b32 v{vT2}, 2, v{vT2}")
    a(f"v_add_u32 v{vT1}, v{vT1}, v{vT2}")
    a(f"v_mul_u32_u24 v{vT1}, 56, v{vT1}")
    a(f"v_add_u32 v{vT0}, v{vT0}, v{vT1}")
    a(f"s_lshr_b32 s{sA}, s{sWV}, 2")
    a(f"s_mul_i32 s{sA}, s{sA}, 1568")
    a(f"s_add_u32 s{sA}, s{sA}, {L_PHI}")
    a(f"v_add_u32 v{vT0}, s{sA}, v{vT0}")
    for s in range(2):
        for u in range(2):
            a(f"ds_read_b64_tr_b16 v[{PF+4*s+2*u}:{PF+4*s+2*u+1}], v{vT0} offset:{(16*s+8*u)*56}")

def pf_fix(a):
    for d in range(8):
        a(f"v_mov_b32_dpp v{PF+d}, v{PF+d} row_shr:2 row_mask:0xa bank_mask:0x8")
    a(f"s_mov_b32 exec_lo, 0")
    a(f"v_mov_b32 v{PF+6}, 0")
    a(f"v_mov_b32 v{PF+7}, 0")
    a(f"s_mov_b64 exec, -1")

def phase_b(a, cfg):
    waits = [4, 5, 5, 5, 5, 4, 4]
    for i in range(7):
        sl = i % 4
        xa = vXA if sl < 2 else vXB
        wa = vWA if sl < 2 else vWB
        so = (sl & 1) * 32768
        a(f"s_waitcnt vmcnt({waits[i]}) lgkmcnt(0)")
        a("s_barrier")
        stamp(a, cfg, f"chunk{i}")
        ops = []
        if i <= 4: ops += kv_ops(a, i + 2)
        if i == 0: ops.append(lambda: issue_misc(a))
        if i == 2: ops.append(lambda: issue_epoch(a, cfg))
        if i == 5: ops += [wq_op(a, 4), wq_op(a, 5), wq_op(a, 6), wq_op(a, 0)]
        if i == 6 and not cfg.wqlate: ops += [wq_op(a, 1), wq_op(a, 2), wq_op(a, 3)]
        def reads(s):
            a(f"ds_read_b128 v[{XF+4*(4*i+s)}:{XF+4*(4*i+s)+3}], v{xa+s} offset:{so}")
            for sec in range(2):
                for u in range(2):
                    b = WF + 8*s + 4*sec + 2*u
                    a(f"ds_read_b64_tr_b16 v[{b}:{b+1}], v{wa} offset:{so + 16384 + sec*8192 + (16*s + 4*u)*128}")
        def mf(s):
            x = vr(XF + 4*(4*i+s), 4)
            first = (i == 0 and s == 0)
            a(f"v_mfma_f32_32x32x16_bf16 {vr(aK,16)}, {vr(WF+8*s,4)}, {x}, {'0' if first else vr(aK,16)}")
            a(f"v_mfma_f32_32x32x16_bf16 {vr(aV,16)}, {x}, {vr(WF+8*s+4,4)}, {'0' if first else vr(aV,16)}")
        def pop():
            if ops: ops.pop(0)()
        reads(0); reads(1); reads(2)
        a("s_waitcnt lgkmcnt(10)")
        mf(0)
        reads(3)
        pop()
        a("s_waitcnt lgkmcnt(10)")
        mf(1)
        pop()
        a("s_waitcnt lgkmcnt(5)")
        mf(2)
        pop()
        if i == 4: pf_frags(a)
        if i == 6:
            a(f"s_mov_b32 exec_lo, 0xf0000000")
            a(f"s_mov_b32 exec_hi, 0xf0000000")
            a(f"ds_write_b128 v{vVSW}, v[{CONST4}:{CONST4+3}]")
            a(f"ds_write_b128 v{vVSW}, v[{CONST4}:{CONST4+3}] offset:1024")
            a(f"s_mov_b64 exec, -1")
            a("s_waitcnt lgkmcnt(2)")
        elif i == 4:
            a("s_waitcnt lgkmcnt(4)")
        else:
            a("s_waitcnt lgkmcnt(0)")
        mf(3)
        while ops: pop()
        if i == 4:
            a("s_waitcnt lgkmcnt(0)")
            pf_fix(a)

def gen(cfg):
    a = A()
    a.label(KNAME)
    a("s_cmp_ge_u32 s2, 256")
    a("s_cbranch_scc1 L_exit")
    if cfg.prof or cfg.dbg:
        a("s_memrealtime s[98:99]")
        a("s_waitcnt lgkmcnt(0)")
        a(f"v_mov_b32 v{vPROF}, 0")
        a(f"v_writelane_b32 v{vPROF}, s98, 63")
        stamp(a, cfg, "start")
    a("s_load_dwordx16 s[4:19], s[0:1], 0")
    a("s_load_dwordx8 s[20:27], s[0:1], 64")
    a(f"v_lshrrev_b32 v{vT0}, 6, v0")
    a(f"v_and_b32 v{vLANE}, 63, v0")
    a(f"s_lshr_b32 s{sJ}, s2, 3")
    a(f"v_readfirstlane_b32 s{sWV}, v{vT0}")
    a(f"s_getpc_b64 s[{sT2}:{sT3}]")
    a.label("L_pc")
    a(f"s_and_b32 s{sT}, s{sJ}, 1")
    a(f"s_lshl_b32 s{sT}, s{sT}, 3")
    a(f"s_add_u32 s{sT}, s{sT}, s{sWV}")
    a(f"s_min_u32 s{sT}, s{sT}, CODE_KB_LEFT")
    a(f"s_lshl_b32 s{sT}, s{sT}, 10")
    a(f"v_lshlrev_b32 v{vT1}, 4, v{vLANE}")
    a(f"v_add_u32 v{vT1}, s{sT}, v{vT1}")
    if not cfg.nopf: a(f"global_load_dwordx4 v[{KB}:{KB+3}], v{vT1}, s[{sT2}:{sT3}]")
    a(f"s_and_b32 s{sX8}, s2, 7")
    a(f"s_and_b32 s{sT}, s{sX8}, 1")
    a(f"s_lshl_b32 s{sT}, s{sT}, 3")
    a(f"s_and_b32 s{sC0}, s{sJ}, 7")
    a(f"s_add_u32 s{sTB}, s{sT}, s{sC0}")
    a(f"s_lshr_b32 s{sBR}, s{sX8}, 2")
    a(f"s_and_b32 s{sH2}, s{sX8}, 2")
    a(f"s_lshl_b32 s{sH2}, s{sH2}, 1")
    a(f"s_lshr_b32 s{sT}, s{sJ}, 3")
    a(f"s_add_u32 s{sH2}, s{sH2}, s{sT}")
    a(f"s_lshl_b32 s{sT}, s{sT}, 1")
    a(f"s_add_u32 s{sC0}, s{sC0}, s{sT}")
    a(f"s_cmp_ge_u32 s{sC0}, 7")
    a(f"s_cselect_b32 s{sT}, 7, 0")
    a(f"s_sub_u32 s{sC0}, s{sC0}, s{sT}")
    a(f"s_lshl_b32 s{sHP}, s{sBR}, 3")
    a(f"s_add_u32 s{sHP}, s{sHP}, s{sH2}")
    a(f"s_sub_u32 s{sWRAP}, 7, s{sC0}")
    a(f"s_lshl_b32 s{sT}, s{sTB}, 7")
    a(f"s_lshl_b32 s{sU}, s{sWV}, 4")
    a(f"s_add_u32 s{sT}, s{sT}, s{sU}")
    a(f"s_mul_i32 s{sXo}, s{sT}, 896")
    a(f"s_lshl_b32 s{sT}, s{sC0}, 7")
    a(f"s_add_u32 s{sXo}, s{sXo}, s{sT}")
    a(f"s_mul_i32 s{sWo}, s{sWV}, {8*2688}")
    a(f"s_mul_i32 s{sT}, s{sH2}, 112")
    a(f"s_add_u32 s{sWo}, s{sWo}, s{sT}")
    a(f"s_mul_i32 s{sT}, s{sC0}, {CH_W}")
    a(f"s_add_u32 s{sWo}, s{sWo}, s{sT}")
    a(f"s_add_u32 s{sWo}, s{sWo}, 896")
    a(f"s_lshl_b32 s{sLdsX}, s{sWV}, 11")
    a(f"s_lshl_b32 s{sLdsW}, s{sWV}, 10")
    a(f"s_movk_i32 s{sK128}, 128")
    a(f"s_mov_b32 s{sKCH}, {CH_W}")
    a(f"v_lshrrev_b32 v{vT0}, 3, v{vLANE}")
    a(f"v_and_b32 v{vT1}, 7, v{vLANE}")
    a(f"v_lshrrev_b32 v{vT2}, 1, v{vT0}")
    a(f"v_xor_b32 v{vT3}, v{vT1}, v{vT2}")
    a(f"v_lshlrev_b32 v{vT3}, 4, v{vT3}")
    a(f"v_mul_u32_u24 v{vT4}, 896, v{vT0}")
    a(f"v_add_u32 v{vDX0}, v{vT4}, v{vT3}")
    a(f"v_xor_b32 v{vT3}, 64, v{vT3}")
    a(f"v_add_u32 v{vDX1}, v{vT4}, v{vT3}")
    a(f"v_add_u32 v{vDX1}, {8*896}, v{vDX1}")
    a(f"v_and_b32 v{vT3}, 1, v{vT2}")
    a(f"v_lshlrev_b32 v{vT3}, 2, v{vT3}")
    a(f"v_xor_b32 v{vT3}, v{vT1}, v{vT3}")
    a(f"v_add_u32 v{vT5}, 1, v{vT3}")
    a(f"v_lshrrev_b32 v{vT5}, 3, v{vT5}")
    a(f"v_lshlrev_b32 v{vT5}, 30, v{vT5}")
    a(f"v_lshlrev_b32 v{vT3}, 4, v{vT3}")
    a(f"v_mul_u32_u24 v{vT4}, 2688, v{vT0}")
    a(f"v_add3_u32 v{vDW}, v{vT4}, v{vT3}, v{vT5}")
    a("s_waitcnt lgkmcnt(0)")
    stamp(a, cfg, "kernarg")
    srd(a, SX, s_AX, XBYTES)
    a(f"s_cmp_eq_u32 s{sBR}, 0")
    a(f"s_cselect_b32 s{SW}, s{s_AW}, s{s_BW}")
    a(f"s_cselect_b32 s{SW+1}, s{s_AW+1}, s{s_BW+1}")
    a(f"s_mov_b32 s{SW+2}, {WBYTES}")
    a(f"s_mov_b32 s{SW+3}, 0x00020000")
    for f in kv_ops(a, 0): f()
    stamp(a, cfg, "c0iss")
    if cfg.exp == "lat0":
        a("s_waitcnt vmcnt(3)"); stamp(a, cfg, "x0land")
        a("s_waitcnt vmcnt(1)"); stamp(a, cfg, "wkland")
        a("s_waitcnt vmcnt(0)"); stamp(a, cfg, "c0land")
    a("s_barrier")
    stamp(a, cfg, "bar0")
    parts = split_parts(lambda t: setup(t, cfg), 5)
    a.l += parts[0]
    for k, f in enumerate(kv_ops(a, 1)):
        f()
        a.l += parts[k + 1]
    srd(a, SWS, s_WS, WS_SIZE)
    srd(a, SOUT, s_OUT, XBYTES)
    srd(a, SOA, s_AWO, WOBYTES)
    srd(a, SOB, s_BWO, WOBYTES)
    stamp(a, cfg, "c1iss")
    phase_b(a, cfg)
    stamp(a, cfg, "Bend")

    a.c("================ phase C1")
    a(f"s_mov_b32 s{sM0}, 0x0fffffff")
    a(f"s_mov_b32 s{sM1}, 0x0fffffff")
    a("s_nop 8")
    for j in range(8):
        a(f"v_cvt_pk_bf16_f32 v{KB+j}, v{aK+2*j}, v{aK+2*j+1}")
    a("s_nop 1")
    a(f"v_mfma_f32_32x32x16_bf16 {vr(aK,16)}, {vr(PF,4)}, {vr(KB,4)}, 0")
    a(f"v_mfma_f32_32x32x16_bf16 {vr(aK,16)}, {vr(PF+4,4)}, {vr(KB+4,4)}, {vr(aK,16)}")
    for j in range(8):
        a(f"v_cvt_pk_bf16_f32 v{WF+j}, v{aV+2*j}, v{aV+2*j+1}")
    a(f"s_mov_b64 exec, s[{sM0}:{sM1}]")
    a(f"ds_write_b128 v{vVSW}, v[{WF}:{WF+3}]")
    a(f"ds_write_b128 v{vVSW}, v[{WF+4}:{WF+7}] offset:1024")
    a(f"s_mov_b64 exec, -1")
    softmax_prep(a, aK)
    exps(a, aK)
    def tree_sum(base, dst, t):
        a(f"v_add_f32 v{t[0]}, v{base}, v{base+1}")
        a(f"v_add_f32 v{t[1]}, v{base+2}, v{base+3}")
        a(f"v_add_f32 v{t[2]}, v{base+4}, v{base+5}")
        a(f"v_add_f32 v{t[3]}, v{base+6}, v{base+7}")
        a(f"v_add_f32 v{t[0]}, v{t[0]}, v{base+8}")
        a(f"v_add_f32 v{t[1]}, v{t[1]}, v{base+9}")
        a(f"v_add_f32 v{t[2]}, v{t[2]}, v{base+10}")
        a(f"v_add_f32 v{t[3]}, v{t[3]}, v{base+11}")
        a(f"v_add_f32 v{t[0]}, v{t[0]}, v{base+12}")
        a(f"v_add_f32 v{t[1]}, v{t[1]}, v{base+13}")
        a(f"v_add_f32 v{t[2]}, v{t[2]}, v{t[3]}")
        a(f"v_add_f32 v{t[0]}, v{t[0]}, v{t[1]}")
        a(f"v_add_f32 v{dst}, v{t[0]}, v{t[2]}")
    tree_sum(EPL, vT0, [vT2, vT3, vT4, vT5])
    tree_sum(EMI, vT1, [vT2, vT3, vT4, vT5])
    PP, PM = WF + 8, WF + 16
    a(f"v_mov_b32 v{PP+7}, 0")
    a(f"v_mov_b32 v{PM+7}, 0")
    a(f"v_permlane32_swap_b32 v{vT0}, v{vT1}")
    a("s_nop 1")
    a(f"v_add_f32 v{vT0}, v{vT0}, v{vT1}")
    a(f"v_rcp_f32 v{vT0}, v{vT0}")
    a("s_nop 0")
    a(f"v_mov_b32 v{vT1}, v{vT0}")
    a("s_nop 1")
    a(f"v_permlane32_swap_b32 v{vT0}, v{vT1}")
    a("s_nop 1")
    for sg, (src, base, rr) in enumerate(((EPL, PP, vT0), (EMI, PM, vT1))):
        for r in range(14):
            a(f"v_mul_f32 v{src+r}, v{src+r}, v{rr}")
        for j in range(7):
            a(f"v_cvt_pk_bf16_f32 v{base+j}, v{src+2*j}, v{src+2*j+1}")
            if j % 2 == 1: a(f"ds_write_b64 v{PHA[4*sg + j//2]}, v[{base+j-1}:{base+j}]")
        a(f"ds_write_b64 v{PHA[4*sg + 3]}, v[{base+6}:{base+7}]")
    a(f"s_waitcnt vmcnt({0 if cfg.wqlate else 3}) lgkmcnt(0)")
    stamp(a, cfg, "C1pre")
    a("s_barrier")
    stamp(a, cfg, "C1end")
    a.c("================ phase C2")
    a(f"v_readfirstlane_b32 s{sTAG}, v{vEPOCH}")
    a(f"s_cmp_ge_u32 s{sWV}, 4")
    a("s_cbranch_scc1 L_c2_hi")
    BF = 96
    def c2_reads(k):
        t4, s = k >> 1, k & 1
        a(f"ds_read_b64_tr_b16 v[{WF+4*k}:{WF+4*k+1}], v{vC2A0} offset:{t4*4096 + s*2048}")
        a(f"ds_read_b64_tr_b16 v[{WF+4*k+2}:{WF+4*k+3}], v{vC2A1} offset:{t4*4096 + s*2048}")
        a(f"ds_read_b128 v[{BF+4*k}:{BF+4*k+3}], v{vC2B} offset:{k*1024}")
    for k in range(5): c2_reads(k)
    a(f"s_lshl_b32 s{sT}, s{sHP}, 4")
    a(f"s_add_u32 s{sT}, s{sT}, s{sTB}")
    a(f"s_lshl_b32 s{sT}, s{sT}, 3")
    a(f"s_lshl_b32 s{sU}, s{sWV}, 1")
    a(f"s_add_u32 s{sT}, s{sT}, s{sU}")
    a(f"s_lshl_b32 s{sT}, s{sT}, 10")
    a(f"s_add_u32 s{sT}, s{sT}, {WS_P}")
    for k in range(8):
        rem = min(5, 8 - k) - 1
        a(f"s_waitcnt lgkmcnt({3*rem})")
        a(f"v_mfma_f32_32x32x16_bf16 {vr(aK,16)}, {vr(WF+4*k,4)}, {vr(BF+4*k,4)}, {'0' if k == 0 else vr(aK,16)}")
        if k + 5 < 8: c2_reads(k + 5)
    a(f"s_lshl_b32 s{sT4}, s{sHP}, 8")
    a(f"s_lshl_b32 s{sU}, s{sTB}, 4")
    a(f"s_add_u32 s{sT4}, s{sT4}, s{sU}")
    a(f"s_lshl_b32 s{sU}, s{sWV}, 2")
    a(f"s_add_u32 s{sT4}, s{sT4}, s{sU}")
    a(f"s_add_u32 s{sT4}, s{sT4}, {WS_FLAG1}")
    a("s_nop 5")
    for j in range(8):
        a(f"v_cvt_pk_bf16_f32 v{KB+j}, v{aK+2*j}, v{aK+2*j+1}")
    a(f"buffer_store_dwordx4 v[{KB}:{KB+3}], v{vL16}, s[{SWS}:{SWS+3}], s{sT} offen sc0 sc1")
    a(f"buffer_store_dwordx4 v[{KB+4}:{KB+7}], v{vL16}, s[{SWS}:{SWS+3}], s{sT} offen offset:1024 sc0 sc1")
    stamp(a, cfg, "C2end")
    RP = 180
    def poll_issue(soff_code, pw=0):
        lab = f"L_pi{len(a.l)}"
        a(f"s_cmp_lg_u32 s{sWV}, {pw}")
        a(f"s_cbranch_scc1 {lab}")
        soff_code()
        a(f"v_lshlrev_b32 v{RP+1}, 2, v{vLANE}")
        a(f"buffer_load_dword v{RP}, v{RP+1}, s[{SWS}:{SWS+3}], s{sPOLL} offen sc0 sc1")
        a.label(lab)
    def poll(lab, pw=0):
        a(f"s_cmp_lg_u32 s{sWV}, {pw}")
        a(f"s_cbranch_scc1 {lab}_done")
        a(f"s_mov_b32 s{sSPIN}, 0")
        a.label(lab)
        a("s_waitcnt vmcnt(0)")
        a(f"v_cmp_ne_u32 vcc, s{sTAG}, v{RP}")
        a(f"s_add_u32 s{sSPIN}, s{sSPIN}, 1")
        a(f"s_cmp_eq_u64 vcc, 0")
        a("s_cbranch_scc1 " + lab + "_done")
        a(f"buffer_load_dword v{RP}, v{RP+1}, s[{SWS}:{SWS+3}], s{sPOLL} offen sc0 sc1")
        a(f"s_cmp_lt_u32 s{sSPIN}, {cfg.maxspin}")
        a(f"s_cbranch_scc1 {lab}")
        a.label(lab + "_done")
    def soff1():
        a(f"s_lshl_b32 s{sPOLL}, s{sHP}, 8")
        a(f"s_add_u32 s{sPOLL}, s{sPOLL}, {WS_FLAG1}")
    QR = 5
    QPOS = [4, 5, 6, 0, 1, 2, 3]
    MID = 16 - QR
    wo_mid = [c for c in range(12) if c not in cfg.wo_c2 and c not in cfg.wo_late]
    def q_gemm(cls):
        def q_reads(k):
            i, s = QPOS[k >> 2], k & 3
            b = WF + 4 * (k % QR)
            for u in range(2):
                a(f"ds_read_b64_tr_b16 v[{b+2*u}:{b+2*u+1}], v{vWQ} offset:{8192*i + (16*s + 4*u)*128}")
            a(f"s_mov_b64 exec, s[{sM0}:{sM1}]")
            a(f"ds_read_b128 v[{b}:{b+3}], v{vGA} offset:{i*128 + s*32}")
            a(f"s_mov_b64 exec, -1")
        a(f"s_mov_b32 s{sM0}, 0x10000000")
        a(f"s_mov_b32 s{sM1}, 0x10000000")
        first = 1 if cls == 0 else MID + 1
        sched = {}
        for n, c in enumerate(wo_mid):
            sched[first + (n * (27 - first)) // max(1, len(wo_mid))] = c
        for k in range(QR): q_reads(k)
        if cls == 0:
            a(f"v_mov_b32 v{vT0}, 0")
            a(f"v_mov_b32 v{vT1}, s{sTAG}")
            a(f"s_waitcnt vmcnt(0)")
            a("s_mov_b64 exec, 1")
            a(f"buffer_store_dword v{vT1}, v{vT0}, s[{SWS}:{SWS+3}], s{sT4} offen sc0 sc1")
            a("s_mov_b64 exec, -1")
            stamp(a, cfg, "flag1")
            a("s_barrier")
            stamp(a, cfg, "qmid")
        for k in range(28):
            rem = min(QR, 28 - k) - 1
            b = WF + 4 * (k % QR)
            xi = 4 * QPOS[k >> 2] + (k & 3)
            a(f"s_waitcnt lgkmcnt({3*rem})")
            a(f"v_mfma_f32_32x32x16_bf16 {vr(aQ,16)}, {vr(b,4)}, {vr(XF+4*xi,4)}, {'0' if k == 0 else vr(aQ,16)}")
            if cls == 1 and k == MID:
                a(f"s_waitcnt vmcnt({1 + 2*len(cfg.wo_c2)})")
                a("s_barrier")
                stamp(a, cfg, "qmid")
            if k + QR < 28: q_reads(k + QR)
            if k in sched: wo_op(a, sched[k])
            if cls == 1 and k == cfg.poll1at: poll_issue(soff1, 4)
    a(f"s_add_u32 s{sTAG}, s{sTAG}, 1")
    q_gemm(0)
    a("s_branch L_q_done")
    a.label("L_c2_hi")
    a(f"s_add_u32 s{sTAG}, s{sTAG}, 1")
    vDQ_live[0] = True
    for p in (1, 2, 3):
        wq_op(a, p)(); wq_op(a, p, partner=True)()
    issue_touch(a, cfg)
    for c in cfg.wo_c2:
        wo_op(a, c); wo_op(a, c, partner=True)
    stamp(a, cfg, "C2end")
    q_gemm(1)
    a.label("L_q_done")
    stamp(a, cfg, "qGEMM")
    a.c("================ sync 1")
    poll("L_poll1", 4)
    a("s_barrier")
    stamp(a, cfg, "sync1")
    a.c("================ phase 2")
    PL = XF
    a(f"s_lshl_b32 s{sT}, s{sHP}, 17")
    a(f"s_lshl_b32 s{sU}, s{sWV}, 10")
    a(f"s_add_u32 s{sT}, s{sT}, s{sU}")
    a(f"s_add_u32 s{sT}, s{sT}, {WS_P}")
    a(f"s_lshl_b32 s{sU}, s{sTB}, 13")
    qparts = split_parts(lambda t: q_features(t, cfg), 16)
    for t in range(16):
        a(f"s_add_u32 s{sT2}, s{sT}, s{sU}")
        a(f"buffer_load_dwordx4 v[{PL+4*t}:{PL+4*t+3}], v{vL16}, s[{SWS}:{SWS+3}], s{sT2} offen sc0 sc1")
        if t < 15:
            a(f"s_add_u32 s{sU}, s{sU}, 8192")
            a(f"s_and_b32 s{sU}, s{sU}, 0x1ffff")
        a.l += qparts[t]
        if cfg.fair and t % cfg.fair == cfg.fair - 1 and t < 15: a("s_barrier")
    late = list(cfg.wo_late) + [12, 13]
    NWO2 = len(late)
    for c in late: wo_op(a, c)
    ACC = 16
    for j in range(8): a(f"v_mov_b32 v{ACC+j}, 0")
    a(f"s_and_b32 s{sU}, s{sWV}, 3")
    a(f"s_lshl_b32 s{sT3}, s{sTB}, 2")
    a(f"s_add_u32 s{sT3}, s{sT3}, s{sU}")
    a(f"s_lshl_b32 s{sT3}, s{sT3}, 1")
    a(f"s_add_u32 s{sT3}, s{sT3}, s{sBR}")
    a(f"s_lshl_b32 s{sT3}, s{sT3}, 4")
    a(f"s_lshl_b32 s{sU}, s{sH2}, 1")
    a(f"s_add_u32 s{sT3}, s{sT3}, s{sU}")
    a(f"s_lshr_b32 s{sU}, s{sWV}, 2")
    a(f"s_add_u32 s{sT3}, s{sT3}, s{sU}")
    a(f"s_lshl_b32 s{sT3}, s{sT3}, 11")
    a(f"s_add_u32 s{sT3}, s{sT3}, {WS_O}")
    a(f"s_lshr_b32 s{sU}, s{sWV}, 1")
    a(f"s_and_b32 s{sU}, s{sU}, 1")
    a(f"s_lshl_b32 s{sT4}, s{sTB}, 1")
    a(f"s_add_u32 s{sT4}, s{sT4}, s{sU}")
    a(f"s_lshl_b32 s{sT4}, s{sT4}, 4")
    a(f"s_add_u32 s{sT4}, s{sT4}, s{sHP}")
    a(f"s_lshl_b32 s{sT4}, s{sT4}, 4")
    a(f"s_lshr_b32 s{sU}, s{sWV}, 2")
    a(f"s_lshl_b32 s{sU}, s{sU}, 3")
    a(f"s_add_u32 s{sT4}, s{sT4}, s{sU}")
    a(f"s_and_b32 s{sU}, s{sWV}, 1")
    a(f"s_lshl_b32 s{sU}, s{sU}, 2")
    a(f"s_add_u32 s{sT4}, s{sT4}, s{sU}")
    a(f"s_add_u32 s{sT4}, s{sT4}, {WS_FLAG2}")
    a(f"s_lshl_b32 s{sU}, s{sWV}, 10")
    a(f"s_add_u32 s{sU}, s{sU}, {L_KVF}")
    a(f"v_add_u32 v{vT2}, s{sU}, v{vL16}")
    a(f"s_lshr_b32 s{sU}, s{sWV}, 2")
    a(f"s_lshl_b32 s{sU}, s{sU}, 12")
    a(f"s_add_u32 s{sU}, s{sU}, {L_KVF}")
    a(f"v_add_u32 v{vT3}, s{sU}, v{vL16}")
    a(f"v_mov_b32 v{vT4}, 0x358637bd")
    a(f"v_mov_b32 v{vT5}, s{sTAG}")
    a(f"s_mov_b32 s{sM0}, 0x88000000")
    a(f"s_mov_b32 s{sM1}, 0x88000000")
    stamp(a, cfg, "P2iss")
    for t in range(16):
        a(f"s_waitcnt vmcnt({NWO2 + 15 - t})")
        for d in range(4):
            a(f"v_dot2c_f32_bf16 v{ACC+2*d}, s{sC_LO}, v{PL+4*t+d}")
            a(f"v_dot2c_f32_bf16 v{ACC+2*d+1}, s{sC_HI}, v{PL+4*t+d}")
    stamp(a, cfg, "P2sum")
    a("s_nop 1")
    for d in range(4):
        a(f"v_cvt_pk_bf16_f32 v{24+d}, v{ACC+2*d}, v{ACC+2*d+1}")
    a(f"s_mov_b64 exec, s[{sM0}:{sM1}]")
    for d in range(4):
        a(f"v_mov_b32 v{24+d}, 0x3f803f80")
    a(f"s_mov_b64 exec, -1")
    a(f"ds_write_b128 v{vT2}, v[24:27]")
    a("s_waitcnt lgkmcnt(0)")
    a("s_barrier")
    for k in (0, 2, 1, 3):
        a(f"ds_read_b128 v[{WF+4*k}:{WF+4*k+3}], v{vT3} offset:{k*1024}")
    DP, DM = 16, 32
    a("s_waitcnt lgkmcnt(3)")
    a(f"v_mfma_f32_32x32x16_bf16 {vr(DP,16)}, {vr(WF,4)}, {vr(EP,4)}, 0")
    a("s_waitcnt lgkmcnt(2)")
    a(f"v_mfma_f32_32x32x16_bf16 {vr(DM,16)}, {vr(WF+8,4)}, {vr(EM,4)}, 0")
    a("s_waitcnt lgkmcnt(1)")
    a(f"v_mfma_f32_32x32x16_bf16 {vr(DP,16)}, {vr(WF+4,4)}, {vr(EP+4,4)}, {vr(DP,16)}")
    a("s_waitcnt lgkmcnt(0)")
    a(f"v_mfma_f32_32x32x16_bf16 {vr(DM,16)}, {vr(WF+12,4)}, {vr(EM+4,4)}, {vr(DM,16)}")
    a(f"v_mov_b32 v{KB+7}, 0")
    a(f"v_mov_b32 v{vJUNK}, 0")
    a("s_nop 9")
    a(f"v_mul_f32 v{vT1}, v{DP+14}, v{DM+15}")
    a(f"v_mul_f32 v{vT2}, v{DP+15}, v{DM+15}")
    a(f"v_fmac_f32 v{vT1}, v{DM+14}, v{DP+15}")
    a(f"v_fmac_f32 v{vT1}, v{vT2}, v{vT4}")
    a(f"v_rcp_f32 v{vT1}, v{vT1}")
    a("s_nop 0")
    a(f"v_mul_f32 v{vT1}, v{vT1}, v{vG}")
    a(f"v_mul_f32 v{vT2}, v{DM+15}, v{vT1}")
    a(f"v_mul_f32 v{vT3}, v{DP+15}, v{vT1}")
    for j in range(7):
        for r in (2*j, 2*j+1):
            a(f"v_mul_f32 v{DP+r}, v{DP+r}, v{vT2}")
        for r in (2*j, 2*j+1):
            a(f"v_fmac_f32 v{DP+r}, v{DM+r}, v{vT3}")
        a(f"v_cvt_pk_bf16_f32 v{KB+j}, v{DP+2*j}, v{DP+2*j+1}")
        if j == 3:
            a(f"buffer_store_dwordx4 v[{KB}:{KB+3}], v{vL16}, s[{SWS}:{SWS+3}], s{sT3} offen sc0 sc1")
    a(f"buffer_store_dwordx4 v[{KB+4}:{KB+7}], v{vL16}, s[{SWS}:{SWS+3}], s{sT3} offen offset:1024 sc0 sc1")
    stamp(a, cfg, "P2st")
    a("s_waitcnt vmcnt(0)")
    a("s_mov_b64 exec, 1")
    a(f"buffer_store_dword v{vT5}, v{vJUNK}, s[{SWS}:{SWS+3}], s{sT4} offen sc0 sc1")
    a("s_mov_b64 exec, -1")
    stamp(a, cfg, "P2end")
    a(f"s_cmp_ge_u32 s{sJ}, 28")
    a("s_cbranch_scc1 L_fin")
    a.c("================ phase 3")
    a("s_barrier")
    AD0, AD1, AS0, AS1 = 176, 177, 178, 179
    OF = 192
    WR = 48
    ACC3 = 16
    a(f"v_lshrrev_b32 v{vT0}, 5, v{vLANE}")
    a(f"v_and_b32 v{vT1}, 15, v{vLANE}")
    a(f"v_lshrrev_b32 v{vT2}, 2, v{vT1}")
    a(f"v_and_b32 v{vT1}, 3, v{vT1}")
    a(f"v_lshlrev_b32 v{vT1}, 3, v{vT1}")
    a(f"v_and_b32 v{vT3}, 16, v{vLANE}")
    a(f"v_lshl_add_u32 v{vT1}, v{vT3}, 1, v{vT1}")
    a(f"s_lshr_b32 s{sU}, s{sWV}, 2")
    a(f"s_mul_i32 s{sT}, s{sU}, 448")
    a(f"s_lshr_b32 s{sU}, s{sWV}, 1")
    a(f"s_and_b32 s{sU}, s{sU}, 1")
    a(f"s_mul_i32 s{sU}, s{sU}, 224")
    a(f"s_add_u32 s{sT}, s{sT}, s{sU}")
    a(f"s_mul_i32 s{sU}, s{sR2}, 28")
    a(f"s_add_u32 s{sT}, s{sT}, s{sU}")
    a(f"s_lshl_b32 s{sT}, s{sT}, 7")
    a(f"v_lshl_add_u32 v{vT3}, v{vT0}, 2, v{vT2}")
    a(f"v_lshlrev_b32 v{vT3}, 7, v{vT3}")
    a(f"v_and_b32 v{vT4}, 2, v{vT2}")
    a(f"v_lshlrev_b32 v{vT4}, 5, v{vT4}")
    a(f"v_xor_b32 v{vT5}, v{vT1}, v{vT4}")
    a(f"v_add_u32 v{vT3}, v{vT3}, v{vT5}")
    a(f"v_add_u32 v{AD0}, s{sT}, v{vT3}")
    a(f"v_xor_b32 v{AD1}, 64, v{AD0}")
    a(f"v_lshl_add_u32 v{vT3}, v{vT0}, 1, v{vT2}")
    a(f"v_add_u32 v{vT5}, 24, v{vT3}")
    a(f"v_add_u32 v{vT3}, 20, v{vT3}")
    a(f"v_cmp_gt_u32 vcc, 2, v{vT2}")
    a(f"v_lshlrev_b32 v{vT0}, 6, v{vT0}")
    a(f"v_xor_b32 v{vT4}, v{vT4}, v{vT0}")
    a(f"v_cndmask_b32 v{vT3}, v{vT3}, v{vT5}, vcc")
    a(f"v_lshlrev_b32 v{vT3}, 7, v{vT3}")
    a(f"v_xor_b32 v{vT5}, v{vT1}, v{vT4}")
    a(f"v_add_u32 v{vT3}, v{vT3}, v{vT5}")
    a(f"v_add_u32 v{AS0}, s{sT}, v{vT3}")
    a(f"v_xor_b32 v{AS1}, 64, v{AS0}")
    def wo_reads(st):
        hl, gi = st >> 1, st & 1
        if gi == 0 and hl >= 2:
            a(f"s_cmp_eq_u32 s{sR2}, {8 - hl}")
            a(f"s_cbranch_scc0 L_nowrap{hl}")
            for k in range(4):
                a(f"v_subrev_u32 v{AD0+k}, {8*3584}, v{AD0+k}")
            a.label(f"L_nowrap{hl}")
        b = WR + 8 * st
        for c2 in range(2):
            a(f"ds_read_b64_tr_b16 v[{b+4*c2}:{b+4*c2+1}], v{AD0+c2} offset:{hl*3584 + 16*gi*128}")
            if gi == 0:
                a(f"ds_read_b64_tr_b16 v[{b+4*c2+2}:{b+4*c2+3}], v{AD0+c2} offset:{hl*3584 + 8*128}")
            else:
                a(f"ds_read_b64_tr_b16 v[{b+4*c2+2}:{b+4*c2+3}], v{AS0+c2} offset:{hl*3584}")
    a(f"s_cmp_eq_u32 s{sWV}, 0")
    a("s_cbranch_scc1 L_w0_poll_first") if cfg.pollfirst else None
    def soff2():
        a(f"s_lshl_b32 s{sPOLL}, s{sT64}, 8")
        a(f"s_add_u32 s{sPOLL}, s{sPOLL}, {WS_FLAG2}")
    for st in range(16):
        wo_reads(st)
        if st == cfg.poll2at: poll_issue(soff2)
    a(f"s_lshl_b32 s{sT2}, s{sT64}, 1")
    a(f"s_and_b32 s{sU}, s{sWV}, 1")
    a(f"s_add_u32 s{sT2}, s{sT2}, s{sU}")
    a(f"s_lshl_b32 s{sT2}, s{sT2}, 1")
    a(f"s_lshr_b32 s{sU}, s{sWV}, 2")
    a(f"s_add_u32 s{sT2}, s{sT2}, s{sU}")
    a(f"s_lshl_b32 s{sT2}, s{sT2}, 15")
    a(f"s_lshr_b32 s{sU}, s{sWV}, 1")
    a(f"s_and_b32 s{sU}, s{sU}, 1")
    a(f"s_lshl_b32 s{sU}, s{sU}, 14")
    a(f"s_add_u32 s{sT2}, s{sT2}, s{sU}")
    a(f"s_add_u32 s{sT2}, s{sT2}, {WS_O}")
    a(f"s_and_b32 s{sU}, s{sWV}, 1")
    a(f"s_lshl_b32 s{sU}, s{sU}, 15")
    a(f"s_lshr_b32 s{sT4}, s{sWV}, 1")
    a(f"s_lshl_b32 s{sT3}, s{sT4}, 11")
    a(f"s_add_u32 s{sT3}, s{sT3}, s{sU}")
    a(f"v_add_u32 v{vT2}, s{sT3}, v{vL16}")
    a(f"s_lshl_b32 s{sT3}, s{sT4}, 13")
    a(f"s_add_u32 s{sT3}, s{sT3}, s{sU}")
    a(f"v_add_u32 v{vT4}, s{sT3}, v{vL16}")
    a(f"s_lshl_b32 s{sT3}, s{sT64}, 1")
    a(f"s_and_b32 s{sU}, s{sWV}, 1")
    a(f"s_add_u32 s{sT3}, s{sT3}, s{sU}")
    a(f"s_mul_i32 s{sT3}, s{sT3}, {32*896}")
    a(f"s_add_u32 s{sT3}, s{sT3}, s{sCT}")
    a(f"s_lshl_b32 s{sU}, s{sT4}, 5")
    a(f"s_add_u32 s{sT3}, s{sT3}, s{sU}")
    a(f"v_and_b32 v{vT3}, 31, v{vLANE}")
    a(f"v_mul_u32_u24 v{vT3}, 896, v{vT3}")
    a(f"v_lshrrev_b32 v{vT5}, 5, v{vLANE}")
    a(f"v_lshl_add_u32 v{vT3}, v{vT5}, 4, v{vT3}")
    stamp(a, cfg, "woiss")
    poll("L_poll2")
    a("s_waitcnt lgkmcnt(0)")
    stamp(a, cfg, "sync2pre")
    a("s_barrier")
    stamp(a, cfg, "sync2")
    a(f"s_lshl_b32 s{sU}, s{sR2}, 11")
    for st in range(16):
        a(f"s_add_u32 s{sT}, s{sT2}, s{sU}")
        a(f"buffer_load_dwordx4 v[{OF+4*st}:{OF+4*st+3}], v{vL16}, s[{SWS}:{SWS+3}], s{sT} offen sc0 sc1")
        if st < 15:
            a(f"s_add_u32 s{sU}, s{sU}, 1024")
            a(f"s_and_b32 s{sU}, s{sU}, 0x3fff")
        if cfg.fair3 and st % cfg.fair3 == cfg.fair3 - 1 and st < 15: a("s_barrier")
    stamp(a, cfg, "P3iss")
    for st in range(16):
        b = WR + 8 * st
        a(f"s_waitcnt vmcnt({15-st})")
        for c2 in range(2):
            a(f"v_mfma_f32_32x32x16_bf16 {vr(ACC3+16*c2,16)}, {vr(b+4*c2,4)}, {vr(OF+4*st,4)}, {'0' if st == 0 else vr(ACC3+16*c2,16)}")
    stamp(a, cfg, "P3mfma")
    a(f"s_cmp_eq_u32 s{sT4}, 0"); a("s_cbranch_scc1 L_rs0")
    a(f"s_cmp_eq_u32 s{sT4}, 1"); a("s_cbranch_scc1 L_rs1")
    a(f"s_cmp_eq_u32 s{sT4}, 2"); a("s_cbranch_scc1 L_rs2")
    for kq in (3, 0, 1, 2):
        if kq != 3: a.label(f"L_rs{kq}")
        a("s_nop 9")
        for q in range(4):
            if q == kq: continue
            r0 = ACC3 + 8 * q
            a(f"ds_write_b128 v{vT2}, v[{r0}:{r0+3}] offset:{q*8192}")
            a(f"ds_write_b128 v{vT2}, v[{r0+4}:{r0+7}] offset:{q*8192+1024}")
        a("s_waitcnt lgkmcnt(0)")
        if kq != 0:
            for j in range(8): a(f"v_mov_b32 v{ACC3+j}, v{ACC3+8*kq+j}")
        a("s_barrier")
        k = 0
        for src in range(4):
            if src == kq: continue
            a(f"ds_read_b128 v[{48+8*k}:{48+8*k+3}], v{vT4} offset:{src*2048}")
            a(f"ds_read_b128 v[{48+8*k+4}:{48+8*k+7}], v{vT4} offset:{src*2048+1024}")
            k += 1
        if kq != 2: a("s_branch L_rsdone")
    a.label("L_rsdone")
    a("s_waitcnt lgkmcnt(4)")
    for j in range(8): a(f"v_add_f32 v{ACC3+j}, v{ACC3+j}, v{48+j}")
    a("s_waitcnt lgkmcnt(2)")
    for j in range(8): a(f"v_add_f32 v{ACC3+j}, v{ACC3+j}, v{56+j}")
    a("s_waitcnt lgkmcnt(0)")
    for j in range(8): a(f"v_add_f32 v{ACC3+j}, v{ACC3+j}, v{64+j}")
    for j in range(4):
        a(f"v_cvt_pk_bf16_f32 v{40+j}, v{ACC3+2*j}, v{ACC3+2*j+1}")
    a("s_nop 1")
    a(f"v_permlane32_swap_b32 v40, v42")
    a(f"v_permlane32_swap_b32 v41, v43")
    a("s_nop 1")
    a(f"buffer_store_dwordx4 v[40:43], v{vT3}, s[{SOUT}:{SOUT+3}], s{sT3} offen")
    a(f"s_or_b32 s{sT}, s2, s{sWV}")
    a(f"s_cmp_lg_u32 s{sT}, 0")
    a("s_cbranch_scc1 L_fin")
    a(f"v_mov_b32 v{vT1}, {WS_EPOCH}")
    a(f"v_mov_b32 v{vT2}, s{sTAG}")
    a("s_mov_b64 exec, 1")
    a(f"buffer_store_dword v{vT2}, v{vT1}, s[{SWS}:{SWS+3}], 0 offen sc0 sc1")
    a("s_mov_b64 exec, -1")
    a.label("L_fin")
    if cfg.dbg:
        stamp(a, cfg, "fin")
        a("s_waitcnt vmcnt(0)")
        stamp(a, cfg, "end")
        a("s_memrealtime s[98:99]")
        a("s_waitcnt lgkmcnt(0)")
        a(f"v_readlane_b32 s{sA}, v{vPROF}, 63")
        a("s_nop 3")
        a(f"s_sub_u32 s{sA}, s98, s{sA}")
        a(f"v_writelane_b32 v{vPROF}, s{sA}, 15")
        a(f"v_readlane_b32 s{sA}, v{vPROF}, 0")
        a("s_nop 3")
        a(f"v_subrev_u32 v{vT1}, s{sA}, v{vPROF}")
        a(f"v_readlane_b32 s{sB}, v{vPROF}, 15")
        a("s_nop 3")
        a(f"v_writelane_b32 v{vT1}, s{sB}, 15")
        a(f"s_lshl_b32 s{sT}, s{sWV}, 16")
        a(f"s_or_b32 s{sT}, s{sT}, s2")
        a(f"s_cmp_lg_u32 s{sT}, {cfg.dbgwg}")
        a("s_cbranch_scc1 L_nodbg")
        srd(a, SMI, s_DBG, 256)
        a(f"v_lshlrev_b32 v{vT0}, 2, v{vLANE}")
        a(f"v_cmp_gt_u32 vcc, 16, v{vLANE}")
        a(f"s_and_saveexec_b64 s[{sEX0}:{sEX0+1}], vcc")
        a(f"buffer_store_dword v{vT1}, v{vT0}, s[{SMI}:{SMI+3}], 0 offen")
        a("s_mov_b64 exec, -1")
        a.label("L_nodbg")
    if cfg.prof:
        stamp(a, cfg, "fin")
        a("s_waitcnt vmcnt(0)")
        stamp(a, cfg, "end")
        a("s_memrealtime s[98:99]")
        a("s_waitcnt lgkmcnt(0)")
        a(f"v_writelane_b32 v{vPROF}, s98, 62")
        a(f"s_lshl_b32 s{sT}, s2, 3")
        a(f"s_add_u32 s{sT}, s{sT}, s{sWV}")
        a(f"s_lshl_b32 s{sT}, s{sT}, 8")
        a(f"s_add_u32 s{sT}, s{sT}, {WS_PROF}")
        a(f"v_lshlrev_b32 v{vT0}, 2, v{vLANE}")
        a(f"buffer_store_dword v{vPROF}, v{vT0}, s[{SWS}:{SWS+3}], s{sT} offen")
        open(cfg.o + ".stamps", "w").write("\n".join(STAMPS))
    a.label("L_exit")
    a("s_endpgm")
    a.label("L_end")
    return a

def wrap(a, cfg):
    hdr = open("gated_mix__linear_kernel_hedgehog__linear_kernel_hedgehog__prompt.s.ref").read().split("\n")
    out = []
    for ln in hdr:
        if ln.startswith("; @launch"):
            out.append("; @launch grid=(256,1,1) block=(512,1,1) lds=163840")
        elif ln.startswith(";"):
            out.append(ln)
        else:
            break
    out += ['.amdgcn_target "amdgcn-amd-amdhsa--gfx950"', ".text", f".globl {KNAME}", ".p2align 8", f".type {KNAME},@function",
            ".set CODE_KB_LEFT, ((L_end - L_pc) / 1024) - 1", a.text(),
            '.section .rodata,"a"', ".p2align 6", f".amdhsa_kernel {KNAME}",
            "  .amdhsa_next_free_vgpr 256", "  .amdhsa_next_free_sgpr 102", "  .amdhsa_accum_offset 256",
            "  .amdhsa_group_segment_fixed_size 0", "  .amdhsa_kernarg_size 96", "  .amdhsa_user_sgpr_count 2",
            "  .amdhsa_user_sgpr_kernarg_segment_ptr 1", "  .amdhsa_system_sgpr_workgroup_id_x 1", ".end_amdhsa_kernel"]
    return "\n".join(out) + "\n"

if __name__ == "__main__":
    ap = argparse.ArgumentParser()
    ap.add_argument("--prof", action="store_true")
    ap.add_argument("--flagstep", type=int, default=6)
    ap.add_argument("--fair", type=int, default=4)
    ap.add_argument("--fair3", type=int, default=0)
    ap.add_argument("--wolate", default="")
    ap.add_argument("--woc2", default="6,7,8,9,10,11")
    ap.add_argument("--maxspin", type=int, default=200000)
    ap.add_argument("--sleep", type=int, default=0)
    ap.add_argument("--pollfirst", action="store_true")
    ap.add_argument("--dbg", action="store_true")
    ap.add_argument("--dbgwg", type=int, default=0)
    ap.add_argument("--poll1at", type=int, default=24)
    ap.add_argument("--poll2at", type=int, default=8)
    ap.add_argument("--wqlate", action="store_true")
    ap.add_argument("--pp", type=int, default=0)
    ap.add_argument("--exp", default="")
    ap.add_argument("--nopf", action="store_true")
    ap.add_argument("-o", default="k.s")
    cfg = ap.parse_args()
    cfg.wo_c2 = [int(x) for x in cfg.woc2.split(",") if x]
    cfg.wo_late = [int(x) for x in cfg.wolate.split(",") if x]
    a = gen(cfg)
    a.l = [x for x in a.l if x is not None]
    txt = wrap(a, cfg)
    open(cfg.o, "w").write(txt)
    import hazard
    errs = hazard.check(a.text())
    for e in errs: print("HAZARD", e)
    print("wrote", cfg.o, len(txt), "bytes;", len(errs), "hazards")
```

```python
import sys, argparse
KNAME = "gated_mix__linear_kernel_hedgehog__linear_kernel_hedgehog__prompt_kernel"

class A:
    def __init__(self): self.l = []
    def __call__(self, s): self.l.append("    " + s)
    def label(self, s): self.l.append(s + ":")
    def c(self, s): self.l.append("    ; " + s)
    def text(self): return "\n".join(self.l) + "\n"

def vr(b, n=1): return f"v{b}" if n == 1 else f"v[{b}:{b+n-1}]"

XBYTES = 2048 * 448 * 2
WBYTES = 448 * 1344 * 2
WOBYTES = 448 * 448 * 2
PHIBYTES = 16 * 28 * 28 * 2
WS_FLAG1 = 0x10000
WS_FLAG2 = 0x20000
WS_EPOCH = 0x4000
WS_P = 0x100000
WS_O = 0x300000
WS_PROF = 0x780000
WS_SIZE = 0x800000
S0, S1, S2, S3 = 0, 32768, 65536, 98304
LM = 131072
L_WQ = S3
L_PHI = 155648
L_GATE = 159744
L_PHIS = S0
L_VS = S1
L_KVF = LM
L_CNT = 161536
LOG2E = 0x3FB8AA3B
CH_W = 64 * 2688

s_AX, s_AW, s_APHI, s_AWO, s_BX, s_BW, s_BPHI, s_BWO = 4, 6, 8, 10, 12, 14, 16, 18
s_GATE, s_OUT, s_DBG, s_WS = 20, 22, 24, 26
SX, SW, SWS, SOA, SOB, SOUT, SMI = 28, 32, 36, 40, 44, 48, 52
sWV, sTB, sBR, sH2, sHP, sC0, sWRAP = 56, 57, 58, 59, 60, 61, 62
sXo, sWo, sT, sU, sLdsX, sLdsW = 63, 64, 65, 66, 67, 68
sTAG, sJ = 69, 70
sLdsWp, sWOBp = 71, 72
sM0, sM1 = 74, 75
sT2, sT3, sT4 = 76, 77, 78
sC_LO, sC_HI = 79, 80
sT64, sCT = 81, 82
sSPIN = 83
sEX0 = 84
sR2, sX8 = 88, 89
sA, sB = 90, 91
sWOB = 93
sK128, sKCH = 94, 95
sPOLL = 96
sWA, sWB = 84, 86
sQ = [4, 5, 6, 7, 12, 13, 14]

vLANE, vVSW, vC, vDO = 1, 2, 3, 4
vT0, vT1, vT2, vT3, vT4, vT5 = 5, 6, 7, 8, 9, 10
vG2, vEPOCH, vJUNK, vL16, vPROF = 11, 12, 13, 14, 15
aK, aV, aQ = 16, 32, 32
WF, PF, KB = 48, 80, 88
EPL, EMI = 96, 110
EP, EM = 124, 132
PHA = [124, 125, 126, 127, 136, 137, 138, 139]
vC2A0, vC2A1, vC2B = 128, 129, 130
CONST4 = 132
vG, vGA, vWQ, vPHW = 140, 141, 142, 143
XF = 144
vXA, vXB = 96, 100
vWA, vWB = 104, 105
vDX0, vDX1, vDW = 106, 107, 108
vDQ = 131

STAMPS = []
DBGSEL = ["start", "kernarg", "chunk0", "chunk3", "Bend", "C1end", "flag1", "qGEMM", "sync1", "P2sum", "P2end", "sync2", "P3mfma", "fin", "end"]
def stamp(a, cfg, name):
    if getattr(cfg, "dbg", False):
        if name in DBGSEL:
            a(f"s_memtime s[100:101]")
            a("s_waitcnt lgkmcnt(0)")
            a(f"v_writelane_b32 v{vPROF}, s100, {DBGSEL.index(name)}")
        return
    if cfg.prof:
        if name not in STAMPS: STAMPS.append(name)
        idx = STAMPS.index(name)
        a(f"s_memtime s[100:101]")
        a("s_waitcnt lgkmcnt(0)")
        a(f"v_writelane_b32 v{vPROF}, s100, {idx}")

def srd(a, d, base, size):
    a(f"s_mov_b32 s{d}, s{base}")
    a(f"s_mov_b32 s{d+1}, s{base+1}")
    a(f"s_mov_b32 s{d+2}, {size}")
    a(f"s_mov_b32 s{d+3}, 0x00020000")

def kv_ops(a, pos):
    base = (pos % 4) * 32768
    def x0():
        a(f"s_add_u32 m0, s{sLdsX}, {base}")
        a(f"s_cmp_eq_u32 s{sWRAP}, {pos + 1}")
        a(f"buffer_load_dwordx4 v{vDX0}, s[{SX}:{SX+3}], s{sXo} offen lds")
        a(f"s_cselect_b32 s{sT2}, {(128 - 896) & 0xffffffff:#x}, s{sK128}")
        a(f"s_cselect_b32 s{sT3}, {(CH_W - 7*CH_W) & 0xffffffff:#x}, s{sKCH}")
    def x1():
        a(f"s_add_u32 m0, s{sLdsX}, {base + 1024}")
        a(f"s_sub_u32 s{sQ[pos]}, s{sWo}, 896")
        a(f"buffer_load_dwordx4 v{vDX1}, s[{SX}:{SX+3}], s{sXo} offen lds")
        a(f"s_add_u32 s{sXo}, s{sXo}, s{sT2}")
    def wk():
        a(f"s_add_u32 m0, s{sLdsW}, {base + 16384}")
        a(f"s_add_u32 s{sT}, s{sWo}, 896")
        a(f"buffer_load_dwordx4 v{vDW}, s[{SW}:{SW+3}], s{sWo} offen lds")
    def wv():
        a(f"s_add_u32 m0, s{sLdsW}, {base + 16384 + 8192}")
        a(f"s_add_u32 s{sWo}, s{sWo}, s{sT3}")
        a(f"buffer_load_dwordx4 v{vDW}, s[{SW}:{SW+3}], s{sT} offen lds")
    return [x0, x1, wk, wv]

def wq_op(a, pos, partner=False):
    def f():
        a(f"s_add_u32 m0, s{sLdsWp if partner else sLdsW}, {L_WQ + 8192*pos}")
        if partner:
            a(f"s_sub_u32 s{sT}, s{sQ[pos]}, {4*8*2688}")
            a(f"buffer_load_dwordx4 v{vDQ}, s[{SW}:{SW+3}], s{sT} offen lds")
        else:
            a("s_nop 0")
            a(f"buffer_load_dwordx4 v{vDQ if vDQ_live[0] else vDW}, s[{SW}:{SW+3}], s{sQ[pos]} offen lds")
    return f
vDQ_live = [False]

def wo_op(a, c, partner=False):
    a(f"s_add_u32 m0, s{sLdsWp if partner else sLdsW}, {c*8192}")
    a(f"s_add_u32 s{sT}, s{sWOBp if partner else sWOB}, {(c % 7) * 8 * 8 * 896}")
    S = SOA if c < 7 else SOB
    a(f"buffer_load_dwordx4 v{vDO}, s[{S}:{S+3}], s{sT} offen lds")

def issue_misc(a):
    a(f"s_cmp_ge_u32 s{sWV}, 4")
    a(f"s_cbranch_scc1 L_gate_dma")
    a(f"s_cmp_eq_u32 s{sBR}, 0")
    a(f"s_cselect_b32 s{SMI}, s{s_APHI}, s{s_BPHI}")
    a(f"s_cselect_b32 s{SMI+1}, s{s_APHI+1}, s{s_BPHI+1}")
    a(f"s_mov_b32 s{SMI+2}, {PHIBYTES}")
    a(f"s_mov_b32 s{SMI+3}, 0x00020000")
    a(f"s_mul_i32 s{sT}, s{sH2}, {2*1568}")
    a(f"s_lshl_b32 s{sU}, s{sWV}, 10")
    a(f"s_add_u32 s{sT}, s{sT}, s{sU}")
    a(f"s_add_u32 m0, s{sU}, {L_PHI}")
    a("s_nop 0")
    a(f"buffer_load_dwordx4 v{vL16}, s[{SMI}:{SMI+3}], s{sT} offen lds")
    a(f"s_branch L_gate_done")
    a.label(f"L_gate_dma")
    a(f"s_mov_b32 s{SMI}, s{s_GATE}")
    a(f"s_mov_b32 s{SMI+1}, s{s_GATE+1}")
    a(f"s_mov_b32 s{SMI+2}, 896")
    a(f"s_mov_b32 s{SMI+3}, 0x00020000")
    a(f"s_and_b32 s{sU}, s{sWV}, 1")
    a(f"s_mul_i32 s{sU}, s{sU}, 896")
    a(f"s_add_u32 m0, s{sU}, {L_GATE}")
    a(f"s_mov_b32 exec_lo, -1")
    a(f"s_mov_b32 exec_hi, 0x00ffffff")
    a(f"buffer_load_dwordx4 v{vL16}, s[{SMI}:{SMI+3}], 0 offen lds")
    a(f"s_mov_b64 exec, -1")
    a.label(f"L_gate_done")

def issue_epoch(a, cfg):
    a(f"v_lshlrev_b32 v{vJUNK}, 21, v{vLANE}")
    a(f"v_min_u32 v{vJUNK}, 0x600000, v{vJUNK}")
    a(f"v_add_u32 v{vJUNK}, {WS_EPOCH}, v{vJUNK}")
    a(f"buffer_load_dword v{vEPOCH}, v{vJUNK}, s[{SWS}:{SWS+3}], 0 offen sc0 sc1")

def issue_warm(a, cfg):
    a(f"s_lshl_b32 s{sA}, s2, 3")
    a(f"s_add_u32 s{sA}, s{sA}, s{sWV}")
    a(f"s_cmp_lt_u32 s{sA}, 784")
    a(f"s_cbranch_scc0 L_warm_q")
    a(f"s_cmp_lt_u32 s{sA}, 392")
    a(f"s_cselect_b32 s{SMI}, s{s_AWO}, s{s_BWO}")
    a(f"s_cselect_b32 s{SMI+1}, s{s_AWO+1}, s{s_BWO+1}")
    a(f"s_cselect_b32 s{sB}, 0, 392")
    a(f"s_sub_u32 s{sA}, s{sA}, s{sB}")
    a(f"s_lshl_b32 s{sA}, s{sA}, 10")
    a(f"s_mov_b32 s{SMI+2}, {WOBYTES}")
    a(f"s_branch L_warm_go")
    a.label("L_warm_q")
    a(f"s_sub_u32 s{sA}, s{sA}, 784")
    a(f"s_cmp_lt_u32 s{sA}, 448")
    a(f"s_cselect_b32 s{SMI}, s{sWA}, s{sWB}")
    a(f"s_cselect_b32 s{SMI+1}, s{sWA+1}, s{sWB+1}")
    a(f"s_cselect_b32 s{sB}, 0, 448")
    a(f"s_sub_u32 s{sA}, s{sA}, s{sB}")
    a(f"s_mul_i32 s{sA}, s{sA}, 2688")
    a(f"s_mov_b32 s{SMI+2}, {WBYTES}")
    a.label("L_warm_go")
    a(f"s_mov_b32 s{SMI+3}, 0x00020000")
    a(f"buffer_load_dwordx4 v[{KB}:{KB+3}], v{vL16}, s[{SMI}:{SMI+3}], s{sA} offen")

def issue_touch(a, cfg):
    a(f"v_lshlrev_b32 v{vT3}, 17, v{vLANE}")
    a(f"s_and_b32 s{sT}, s{sWV}, 3")
    a(f"s_cmp_eq_u32 s{sT}, 1")
    a(f"s_cselect_b32 s{SMI}, s{s_AWO}, s{s_OUT}")
    a(f"s_cselect_b32 s{SMI+1}, s{s_AWO+1}, s{s_OUT+1}")
    a(f"s_cmp_eq_u32 s{sT}, 2")
    a(f"s_cselect_b32 s{SMI}, s{s_BWO}, s{SMI}")
    a(f"s_cselect_b32 s{SMI+1}, s{s_BWO+1}, s{SMI+1}")
    a(f"s_mov_b32 s{SMI+2}, {WOBYTES}")
    a(f"s_mov_b32 s{SMI+3}, 0x00020000")
    a(f"buffer_load_dword v0, v{vT3}, s[{SMI}:{SMI+3}], 0 offen")

def split_parts(fn, n):
    t = A(); fn(t)
    groups = []; cur = []
    for ln in t.l:
        cur.append(ln)
        if not ln.strip().startswith("v_cmp") and "s_nop" not in ln:
            groups.append(cur); cur = []
    if cur: groups.append(cur)
    parts = [[] for _ in range(n)]
    for k, g in enumerate(groups): parts[min(n - 1, k * n // len(groups))] += g
    return parts

def setup(a, cfg):
    a(f"v_lshlrev_b32 v{vL16}, 4, v{vLANE}")
    a(f"v_and_b32 v{vT0}, 31, v{vLANE}")
    a(f"v_lshrrev_b32 v{vT1}, 5, v{vLANE}")
    a(f"v_lshrrev_b32 v{vT2}, 1, v{vT0}")
    a(f"v_and_b32 v{vT2}, 7, v{vT2}")
    a(f"v_xor_b32 v{vT2}, v{vT2}, v{vT1}")
    a(f"v_lshlrev_b32 v{vT2}, 4, v{vT2}")
    a(f"s_and_b32 s{sA}, s{sWV}, 3")
    a(f"s_lshl_b32 s{sA}, s{sA}, 12")
    a(f"v_lshlrev_b32 v{vT3}, 7, v{vT0}")
    a(f"v_add_u32 v{vT3}, s{sA}, v{vT3}")
    a(f"v_add_u32 v{vT3}, v{vT3}, v{vT2}")
    for s in range(4):
        a(f"v_xor_b32 v{vXA+s}, {32*s}, v{vT3}")
        a(f"v_add_u32 v{vXB+s}, 65536, v{vXA+s}")
    a(f"v_and_b32 v{vT2}, 15, v{vLANE}")
    a(f"v_lshrrev_b32 v{vT3}, 2, v{vT2}")
    a(f"v_and_b32 v{vT2}, 3, v{vT2}")
    a(f"v_lshlrev_b32 v{vT2}, 3, v{vT2}")
    a(f"v_and_b32 v{vT4}, 16, v{vLANE}")
    a(f"v_lshlrev_b32 v{vT4}, 1, v{vT4}")
    a(f"v_add_u32 v{vT2}, v{vT2}, v{vT4}")
    a(f"s_lshr_b32 s{sA}, s{sWV}, 2")
    a(f"s_mul_i32 s{sB}, s{sA}, 56")
    a(f"v_add_u32 v{vT2}, s{sB}, v{vT2}")
    a(f"v_and_b32 v{vT4}, 2, v{vT3}")
    a(f"v_lshlrev_b32 v{vT4}, 5, v{vT4}")
    a(f"v_xor_b32 v{vT2}, v{vT2}, v{vT4}")
    a(f"v_lshlrev_b32 v{vT4}, 3, v{vT1}")
    a(f"v_add_u32 v{vT4}, v{vT4}, v{vT3}")
    a(f"v_lshlrev_b32 v{vT4}, 7, v{vT4}")
    a(f"v_add_u32 v{vWA}, v{vT4}, v{vT2}")
    a(f"v_add_u32 v{vWB}, 65536, v{vWA}")
    a(f"v_add_u32 v{vWQ}, {L_WQ}, v{vWA}")
    a(f"s_lshl_b32 s{sB}, s{sC0}, 7")
    a(f"s_add_u32 s{sB}, s{sB}, {L_GATE}")
    a(f"v_lshlrev_b32 v{vGA}, 4, v{vT1}")
    a(f"v_add_u32 v{vGA}, s{sB}, v{vGA}")
    a(f"v_and_b32 v{vT2}, 5, v{vT0}")
    a(f"v_and_b32 v{vT3}, 2, v{vT0}")
    a(f"v_lshlrev_b32 v{vT3}, 2, v{vT3}")
    a(f"v_or_b32 v{vT2}, v{vT2}, v{vT3}")
    a(f"v_and_b32 v{vT3}, 8, v{vT0}")
    a(f"v_lshrrev_b32 v{vT3}, 2, v{vT3}")
    a(f"v_or_b32 v{vT2}, v{vT2}, v{vT3}")
    a(f"v_xor_b32 v{vT2}, v{vT2}, v{vT1}")
    a(f"v_lshlrev_b32 v{vT2}, 3, v{vT2}")
    a(f"v_lshlrev_b32 v{vT3}, 7, v{vT0}")
    a(f"v_add_u32 v{vT2}, v{vT2}, v{vT3}")
    a(f"s_and_b32 s{sB}, s{sWV}, 3")
    a(f"s_lshl_b32 s{sB}, s{sB}, 12")
    a(f"s_lshl_b32 s{sA}, s{sA}, 14")
    a(f"s_add_u32 s{sB}, s{sB}, s{sA}")
    a(f"s_add_u32 s{sB}, s{sB}, {L_PHIS}")
    a(f"v_add_u32 v{vPHW}, s{sB}, v{vT2}")
    for sg in range(2):
        for i4 in range(4):
            a(f"v_xor_b32 v{PHA[4*sg+i4]}, {((8*sg + 2*i4) << 3)}, v{vPHW}")
    a(f"v_add_u32 v{vT2}, 2, v{vT0}")
    a(f"v_subrev_u32 v{vT3}, 2, v{vT0}")
    a(f"v_mov_b32 v{vT4}, v{vT0}")
    a(f"v_cmp_lt_u32 vcc, 25, v{vT0}")
    a("s_nop 1")
    a(f"v_cndmask_b32 v{vT4}, v{vT4}, v{vT2}, vcc")
    a(f"v_cmp_lt_u32 vcc, 27, v{vT0}")
    a("s_nop 1")
    a(f"v_cndmask_b32 v{vT4}, v{vT4}, v{vT3}, vcc")
    a(f"v_cmp_lt_u32 vcc, 29, v{vT0}")
    a("s_nop 1")
    a(f"v_cndmask_b32 v{vT4}, v{vT4}, v{vT0}, vcc")
    a(f"v_lshlrev_b32 v{vT2}, 5, v{vT1}")
    a(f"v_add_u32 v{vT4}, v{vT4}, v{vT2}")
    a(f"v_lshlrev_b32 v{vT4}, 4, v{vT4}")
    a(f"s_lshl_b32 s{sB}, s{sWV}, 11")
    a(f"s_add_u32 s{sB}, s{sB}, {L_VS}")
    a(f"v_add_u32 v{vVSW}, s{sB}, v{vT4}")
    a(f"v_and_b32 v{vT2}, 1, v{vT0}")
    a(f"v_subrev_u32 v{vT2}, 1, v{vT2}")
    a(f"v_and_b32 v{CONST4}, 0x3f803f80, v{vT2}")
    for i in range(1, 4): a(f"v_mov_b32 v{CONST4+i}, v{CONST4}")
    a(f"v_mov_b32 v{vT2}, {L_CNT}")
    a(f"v_mov_b32 v{vT3}, 0")
    a(f"ds_write_b32 v{vT2}, v{vT3}")
    a(f"v_mov_b32 v{vC}, {LOG2E:#x}")
    a(f"v_mov_b32 v{vDQ}, v{vDW}")
    a(f"v_and_b32 v{vT0}, 15, v{vLANE}")
    a(f"v_lshrrev_b32 v{vT2}, 2, v{vT0}")
    a(f"v_and_b32 v{vT0}, 3, v{vT0}")
    a(f"v_and_b32 v{vT3}, 16, v{vLANE}")
    a(f"v_lshrrev_b32 v{vT3}, 2, v{vT3}")
    a(f"v_add_u32 v{vT0}, v{vT0}, v{vT3}")
    a(f"s_and_b32 s{sA}, s{sWV}, 1")
    a(f"s_lshl_b32 s{sA}, s{sA}, 3")
    a(f"v_add_u32 v{vT0}, s{sA}, v{vT0}")
    a(f"v_lshlrev_b32 v{vT3}, 2, v{vT1}")
    a(f"v_add_u32 v{vT2}, v{vT2}, v{vT3}")
    a(f"v_and_b32 v{vT3}, 5, v{vT2}")
    a(f"v_and_b32 v{vT4}, 2, v{vT2}")
    a(f"v_lshlrev_b32 v{vT4}, 2, v{vT4}")
    a(f"v_or_b32 v{vT3}, v{vT3}, v{vT4}")
    a(f"v_xor_b32 v{vT3}, v{vT3}, v{vT0}")
    a(f"v_lshlrev_b32 v{vT3}, 3, v{vT3}")
    a(f"v_lshlrev_b32 v{vT4}, 7, v{vT2}")
    a(f"v_add_u32 v{vT3}, v{vT3}, v{vT4}")
    a(f"s_lshr_b32 s{sA}, s{sWV}, 1")
    a(f"s_and_b32 s{sA}, s{sA}, 1")
    a(f"s_lshl_b32 s{sB}, s{sA}, 14")
    a(f"s_add_u32 s{sB}, s{sB}, {L_PHIS}")
    a(f"v_add_u32 v{vC2A0}, s{sB}, v{vT3}")
    a(f"v_xor_b32 v{vC2A1}, 16, v{vC2A0}")
    a(f"v_add_u32 v{vC2A1}, 1024, v{vC2A1}")
    a(f"s_lshl_b32 s{sA}, s{sA}, 13")
    a(f"s_add_u32 s{sA}, s{sA}, {L_VS}")
    a(f"v_add_u32 v{vC2B}, s{sA}, v{vL16}")
    a(f"v_lshrrev_b32 v{vT0}, 3, v{vLANE}")
    a(f"v_and_b32 v{vT1}, 7, v{vLANE}")
    a(f"v_and_b32 v{vT2}, 2, v{vT0}")
    a(f"v_lshlrev_b32 v{vT3}, 1, v{vT2}")
    a(f"v_xor_b32 v{vT3}, v{vT1}, v{vT3}")
    a(f"v_lshlrev_b32 v{vT3}, 4, v{vT3}")
    a(f"v_mul_u32_u24 v{vT4}, 896, v{vT0}")
    a(f"v_add_u32 v{vDO}, v{vT4}, v{vT3}")
    a(f"s_min_u32 s{sA}, s{sJ}, 27")
    a(f"s_mul_i32 s{sB}, s{sA}, 37")
    a(f"s_lshr_b32 s{sB}, s{sB}, 8")
    a(f"s_lshl_b32 s{sT64}, s{sX8}, 2")
    a(f"s_add_u32 s{sT64}, s{sT64}, s{sB}")
    a(f"s_mul_i32 s{sB}, s{sB}, 7")
    a(f"s_sub_u32 s{sR2}, s{sA}, s{sB}")
    a(f"s_lshl_b32 s{sCT}, s{sR2}, 7")
    a(f"s_mul_i32 s{sWOB}, s{sWV}, {8*896}")
    a(f"s_add_u32 s{sWOB}, s{sWOB}, s{sCT}")
    a(f"s_sub_u32 s{sWOBp}, s{sWOB}, {4*8*896}")
    a(f"s_sub_u32 s{sLdsWp}, s{sLdsW}, 4096")
    a(f"s_mov_b32 s{sC_LO}, 0x00003f80")
    a(f"s_mov_b32 s{sC_HI}, 0x3f800000")

def softmax_prep(a, P):
    a(f"v_max3_f32 v{vT2}, v{P}, v{P+1}, v{P+2}")
    a(f"v_min3_f32 v{vT1}, v{P}, v{P+1}, v{P+2}")
    a(f"v_max3_f32 v{vT3}, v{P+3}, v{P+4}, v{P+5}")
    a(f"v_min3_f32 v{vG2}, v{P+3}, v{P+4}, v{P+5}")
    a(f"v_max3_f32 v{vT4}, v{P+6}, v{P+7}, v{P+8}")
    a(f"v_min3_f32 v{vJUNK}, v{P+6}, v{P+7}, v{P+8}")
    a(f"v_max3_f32 v{vT5}, v{P+9}, v{P+10}, v{P+11}")
    a(f"v_min3_f32 v{vT0}, v{P+9}, v{P+10}, v{P+11}")
    a(f"v_max3_f32 v{vT2}, v{P+12}, v{P+13}, v{vT2}")
    a(f"v_min3_f32 v{vT1}, v{P+12}, v{P+13}, v{vT1}")
    a(f"v_max3_f32 v{vT3}, v{vT3}, v{vT4}, v{vT5}")
    a(f"v_min3_f32 v{vG2}, v{vG2}, v{vJUNK}, v{vT0}")
    a(f"v_max_f32 v{vT0}, v{vT2}, v{vT3}")
    a(f"v_min_f32 v{vT1}, v{vT1}, v{vG2}")
    a(f"v_mul_f32_e64 v{vT0}, -v{vC}, v{vT0}")
    a(f"v_mul_f32 v{vT1}, v{vC}, v{vT1}")
    a("s_nop 1")
    a(f"v_permlane32_swap_b32 v{vT0}, v{vT1}")
    a("s_nop 1")
    a(f"v_min_f32 v{vT0}, v{vT0}, v{vT1}")
    a(f"v_mov_b32 v{vT1}, v{vT0}")
    a("s_nop 1")
    a(f"v_permlane32_swap_b32 v{vT0}, v{vT1}")
    a("s_nop 1")

def exps(a, P):
    for r in range(14):
        a(f"v_fma_f32 v{EPL+r}, v{P+r}, v{vC}, v{vT0}")
        a(f"v_fma_f32 v{EMI+r}, v{P+r}, -v{vC}, v{vT1}")
    for r in range(14):
        a(f"v_exp_f32 v{EPL+r}, v{EPL+r}")
    for r in range(14):
        a(f"v_exp_f32 v{EMI+r}, v{EMI+r}")

def q_features(a, cfg):
    a(f"s_cmp_eq_u32 s{sBR}, 0")
    a(f"s_cselect_b32 s{sA}, 0x80000000, 0")
    a("s_nop 9")
    a(f"v_mov_b32 v{vG}, v{aQ+12}")
    a(f"v_mov_b32 v{vG2}, v{aQ+12}")
    for j in range(8):
        a(f"v_cvt_pk_bf16_f32 v{KB+j}, v{aQ+2*j}, v{aQ+2*j+1}")
    a(f"v_permlane32_swap_b32 v{vG}, v{vG2}")
    a("s_nop 0")
    a(f"v_mfma_f32_32x32x16_bf16 {vr(aK,16)}, {vr(PF,4)}, {vr(KB,4)}, 0")
    a(f"v_mfma_f32_32x32x16_bf16 {vr(aK,16)}, {vr(PF+4,4)}, {vr(KB+4,4)}, {vr(aK,16)}")
    a(f"v_mul_f32 v{vG}, v{vC}, v{vG2}")
    a(f"v_xor_b32 v{vG}, s{sA}, v{vG}")
    a(f"v_exp_f32 v{vG}, v{vG}")
    a("s_nop 0")
    a(f"v_add_f32 v{vG}, 1.0, v{vG}")
    a(f"v_rcp_f32 v{vG}, v{vG}")
    a(f"v_mov_b32 v{EP+7}, 0")
    a(f"v_mov_b32 v{EM+7}, 0")
    a("s_nop 4")
    softmax_prep(a, aK)
    exps(a, aK)
    for j in range(7):
        a(f"v_cvt_pk_bf16_f32 v{EP+j}, v{EPL+2*j}, v{EPL+2*j+1}")
    for j in range(7):
        a(f"v_cvt_pk_bf16_f32 v{EM+j}, v{EMI+2*j}, v{EMI+2*j+1}")

def pf_frags(a):
    a.c("w_phi^T fragments")
    a(f"v_and_b32 v{vT0}, 15, v{vLANE}")
    a(f"v_lshrrev_b32 v{vT1}, 2, v{vT0}")
    a(f"v_and_b32 v{vT0}, 3, v{vT0}")
    a(f"v_and_b32 v{vT2}, 16, v{vLANE}")
    a(f"v_lshrrev_b32 v{vT2}, 2, v{vT2}")
    a(f"v_add_u32 v{vT0}, v{vT0}, v{vT2}")
    a(f"v_min_u32 v{vT0}, 6, v{vT0}")
    a(f"v_lshlrev_b32 v{vT0}, 3, v{vT0}")
    a(f"v_lshrrev_b32 v{vT2}, 5, v{vLANE}")
    a(f"v_lshlrev_b32 v{vT2}, 2, v{vT2}")
    a(f"v_add_u32 v{vT1}, v{vT1}, v{vT2}")
    a(f"v_mul_u32_u24 v{vT1}, 56, v{vT1}")
    a(f"v_add_u32 v{vT0}, v{vT0}, v{vT1}")
    a(f"s_lshr_b32 s{sA}, s{sWV}, 2")
    a(f"s_mul_i32 s{sA}, s{sA}, 1568")
    a(f"s_add_u32 s{sA}, s{sA}, {L_PHI}")
    a(f"v_add_u32 v{vT0}, s{sA}, v{vT0}")
    for s in range(2):
        for u in range(2):
            a(f"ds_read_b64_tr_b16 v[{PF+4*s+2*u}:{PF+4*s+2*u+1}], v{vT0} offset:{(16*s+8*u)*56}")

def pf_fix(a):
    for d in range(8):
        a(f"v_mov_b32_dpp v{PF+d}, v{PF+d} row_shr:2 row_mask:0xa bank_mask:0x8")
    a(f"s_mov_b32 exec_lo, 0")
    a(f"v_mov_b32 v{PF+6}, 0")
    a(f"v_mov_b32 v{PF+7}, 0")
    a(f"s_mov_b64 exec, -1")

def phase_b(a, cfg):
    base_ops = [5, 4, 5, 4, 4, 4, 0]
    if cfg.warm >= 0: base_ops[cfg.warm] += 1
    waits = [4]
    for i in range(1, 7):
        after = (base_ops[i-2] - 4 if i >= 2 else 0) + base_ops[i-1] if i >= 2 else base_ops[0]
        waits.append(after)
    for i in range(7):
        sl = i % 4
        xa = vXA if sl < 2 else vXB
        wa = vWA if sl < 2 else vWB
        so = (sl & 1) * 32768
        a(f"s_waitcnt vmcnt({waits[i]}) lgkmcnt(0)")
        a("s_barrier")
        stamp(a, cfg, f"chunk{i}")
        ops = []
        if i <= 4: ops += kv_ops(a, i + 2)
        if i == 0: ops.append(lambda: issue_misc(a))
        if i == 2: ops.append(lambda: issue_epoch(a, cfg))
        if cfg.warm >= 0 and i == cfg.warm: ops.append(lambda: issue_warm(a, cfg))
        if i == 5: ops += [wq_op(a, 4), wq_op(a, 5), wq_op(a, 6), wq_op(a, 0)]
        if i == 6 and not cfg.wqlate: ops += [wq_op(a, 1), wq_op(a, 2), wq_op(a, 3)]
        def reads(s):
            a(f"ds_read_b128 v[{XF+4*(4*i+s)}:{XF+4*(4*i+s)+3}], v{xa+s} offset:{so}")
            for sec in range(2):
                for u in range(2):
                    b = WF + 8*s + 4*sec + 2*u
                    a(f"ds_read_b64_tr_b16 v[{b}:{b+1}], v{wa} offset:{so + 16384 + sec*8192 + (16*s + 4*u)*128}")
        def mf(s):
            x = vr(XF + 4*(4*i+s), 4)
            first = (i == 0 and s == 0)
            a(f"v_mfma_f32_32x32x16_bf16 {vr(aK,16)}, {vr(WF+8*s,4)}, {x}, {'0' if first else vr(aK,16)}")
            a(f"v_mfma_f32_32x32x16_bf16 {vr(aV,16)}, {x}, {vr(WF+8*s+4,4)}, {'0' if first else vr(aV,16)}")
        def pop():
            if ops: ops.pop(0)()
        reads(0); reads(1); reads(2)
        a("s_waitcnt lgkmcnt(10)")
        mf(0)
        reads(3)
        pop()
        a("s_waitcnt lgkmcnt(10)")
        mf(1)
        pop()
        a("s_waitcnt lgkmcnt(5)")
        mf(2)
        pop()
        if i == 4: pf_frags(a)
        if i == 6:
            a(f"s_mov_b32 exec_lo, 0xf0000000")
            a(f"s_mov_b32 exec_hi, 0xf0000000")
            a(f"ds_write_b128 v{vVSW}, v[{CONST4}:{CONST4+3}]")
            a(f"ds_write_b128 v{vVSW}, v[{CONST4}:{CONST4+3}] offset:1024")
            a(f"s_mov_b64 exec, -1")
            a("s_waitcnt lgkmcnt(2)")
        elif i == 4:
            a("s_waitcnt lgkmcnt(4)")
        else:
            a("s_waitcnt lgkmcnt(0)")
        mf(3)
        while ops: pop()
        if i == 4:
            a("s_waitcnt lgkmcnt(0)")
            pf_fix(a)

def gen(cfg):
    a = A()
    a.label(KNAME)
    a("s_cmp_ge_u32 s2, 256")
    a("s_cbranch_scc1 L_exit")
    if cfg.prof or cfg.dbg:
        a("s_memrealtime s[98:99]")
        a("s_waitcnt lgkmcnt(0)")
        a(f"v_mov_b32 v{vPROF}, 0")
        a(f"v_writelane_b32 v{vPROF}, s98, 63")
        stamp(a, cfg, "start")
    a("s_load_dwordx16 s[4:19], s[0:1], 0")
    a("s_load_dwordx8 s[20:27], s[0:1], 64")
    a(f"v_lshrrev_b32 v{vT0}, 6, v0")
    a(f"v_and_b32 v{vLANE}, 63, v0")
    a(f"s_lshr_b32 s{sJ}, s2, 3")
    a(f"v_readfirstlane_b32 s{sWV}, v{vT0}")
    a(f"s_getpc_b64 s[{sT2}:{sT3}]")
    a.label("L_pc")
    a(f"s_and_b32 s{sT}, s{sJ}, 1")
    a(f"s_lshl_b32 s{sT}, s{sT}, 3")
    a(f"s_add_u32 s{sT}, s{sT}, s{sWV}")
    a(f"s_min_u32 s{sT}, s{sT}, CODE_KB_LEFT")
    a(f"s_lshl_b32 s{sT}, s{sT}, 10")
    a(f"v_lshlrev_b32 v{vT1}, 4, v{vLANE}")
    a(f"v_add_u32 v{vT1}, s{sT}, v{vT1}")
    if not cfg.nopf: a(f"global_load_dwordx4 v[{KB}:{KB+3}], v{vT1}, s[{sT2}:{sT3}]")
    a(f"s_and_b32 s{sX8}, s2, 7")
    a(f"s_and_b32 s{sT}, s{sX8}, 1")
    a(f"s_lshl_b32 s{sT}, s{sT}, 3")
    a(f"s_and_b32 s{sC0}, s{sJ}, 7")
    a(f"s_add_u32 s{sTB}, s{sT}, s{sC0}")
    a(f"s_lshr_b32 s{sBR}, s{sX8}, 2")
    a(f"s_and_b32 s{sH2}, s{sX8}, 2")
    a(f"s_lshl_b32 s{sH2}, s{sH2}, 1")
    a(f"s_lshr_b32 s{sT}, s{sJ}, 3")
    a(f"s_add_u32 s{sH2}, s{sH2}, s{sT}")
    a(f"s_lshl_b32 s{sT}, s{sT}, 1")
    a(f"s_add_u32 s{sC0}, s{sC0}, s{sT}")
    a(f"s_cmp_ge_u32 s{sC0}, 7")
    a(f"s_cselect_b32 s{sT}, 7, 0")
    a(f"s_sub_u32 s{sC0}, s{sC0}, s{sT}")
    a(f"s_lshl_b32 s{sHP}, s{sBR}, 3")
    a(f"s_add_u32 s{sHP}, s{sHP}, s{sH2}")
    a(f"s_sub_u32 s{sWRAP}, 7, s{sC0}")
    a(f"s_lshl_b32 s{sT}, s{sTB}, 7")
    a(f"s_lshl_b32 s{sU}, s{sWV}, 4")
    a(f"s_add_u32 s{sT}, s{sT}, s{sU}")
    a(f"s_mul_i32 s{sXo}, s{sT}, 896")
    a(f"s_lshl_b32 s{sT}, s{sC0}, 7")
    a(f"s_add_u32 s{sXo}, s{sXo}, s{sT}")
    a(f"s_mul_i32 s{sWo}, s{sWV}, {8*2688}")
    a(f"s_mul_i32 s{sT}, s{sH2}, 112")
    a(f"s_add_u32 s{sWo}, s{sWo}, s{sT}")
    a(f"s_mul_i32 s{sT}, s{sC0}, {CH_W}")
    a(f"s_add_u32 s{sWo}, s{sWo}, s{sT}")
    a(f"s_add_u32 s{sWo}, s{sWo}, 896")
    a(f"s_lshl_b32 s{sLdsX}, s{sWV}, 11")
    a(f"s_lshl_b32 s{sLdsW}, s{sWV}, 10")
    a(f"s_movk_i32 s{sK128}, 128")
    a(f"s_mov_b32 s{sKCH}, {CH_W}")
    a(f"v_lshrrev_b32 v{vT0}, 3, v{vLANE}")
    a(f"v_and_b32 v{vT1}, 7, v{vLANE}")
    a(f"v_lshrrev_b32 v{vT2}, 1, v{vT0}")
    a(f"v_xor_b32 v{vT3}, v{vT1}, v{vT2}")
    a(f"v_lshlrev_b32 v{vT3}, 4, v{vT3}")
    a(f"v_mul_u32_u24 v{vT4}, 896, v{vT0}")
    a(f"v_add_u32 v{vDX0}, v{vT4}, v{vT3}")
    a(f"v_xor_b32 v{vT3}, 64, v{vT3}")
    a(f"v_add_u32 v{vDX1}, v{vT4}, v{vT3}")
    a(f"v_add_u32 v{vDX1}, {8*896}, v{vDX1}")
    a(f"v_and_b32 v{vT3}, 1, v{vT2}")
    a(f"v_lshlrev_b32 v{vT3}, 2, v{vT3}")
    a(f"v_xor_b32 v{vT3}, v{vT1}, v{vT3}")
    a(f"v_add_u32 v{vT5}, 1, v{vT3}")
    a(f"v_lshrrev_b32 v{vT5}, 3, v{vT5}")
    a(f"v_lshlrev_b32 v{vT5}, 30, v{vT5}")
    a(f"v_lshlrev_b32 v{vT3}, 4, v{vT3}")
    a(f"v_mul_u32_u24 v{vT4}, 2688, v{vT0}")
    a(f"v_add3_u32 v{vDW}, v{vT4}, v{vT3}, v{vT5}")
    a("s_waitcnt lgkmcnt(0)")
    stamp(a, cfg, "kernarg")
    srd(a, SX, s_AX, XBYTES)
    a(f"s_mov_b64 s[{sWA}:{sWA+1}], s[{s_AW}:{s_AW+1}]")
    a(f"s_mov_b64 s[{sWB}:{sWB+1}], s[{s_BW}:{s_BW+1}]")
    a(f"s_cmp_eq_u32 s{sBR}, 0")
    a(f"s_cselect_b32 s{SW}, s{s_AW}, s{s_BW}")
    a(f"s_cselect_b32 s{SW+1}, s{s_AW+1}, s{s_BW+1}")
    a(f"s_mov_b32 s{SW+2}, {WBYTES}")
    a(f"s_mov_b32 s{SW+3}, 0x00020000")
    for f in kv_ops(a, 0): f()
    stamp(a, cfg, "c0iss")
    if cfg.exp == "lat0":
        a("s_waitcnt vmcnt(3)"); stamp(a, cfg, "x0land")
        a("s_waitcnt vmcnt(1)"); stamp(a, cfg, "wkland")
        a("s_waitcnt vmcnt(0)"); stamp(a, cfg, "c0land")
    a("s_barrier")
    stamp(a, cfg, "bar0")
    parts = split_parts(lambda t: setup(t, cfg), 5)
    a.l += parts[0]
    for k, f in enumerate(kv_ops(a, 1)):
        f()
        a.l += parts[k + 1]
    srd(a, SWS, s_WS, WS_SIZE)
    srd(a, SOUT, s_OUT, XBYTES)
    srd(a, SOA, s_AWO, WOBYTES)
    srd(a, SOB, s_BWO, WOBYTES)
    stamp(a, cfg, "c1iss")
    phase_b(a, cfg)
    stamp(a, cfg, "Bend")

    a.c("================ phase C1")
    a(f"s_mov_b32 s{sM0}, 0x0fffffff")
    a(f"s_mov_b32 s{sM1}, 0x0fffffff")
    a("s_nop 8")
    for j in range(8):
        a(f"v_cvt_pk_bf16_f32 v{KB+j}, v{aK+2*j}, v{aK+2*j+1}")
    a("s_nop 1")
    a(f"v_mfma_f32_32x32x16_bf16 {vr(aK,16)}, {vr(PF,4)}, {vr(KB,4)}, 0")
    a(f"v_mfma_f32_32x32x16_bf16 {vr(aK,16)}, {vr(PF+4,4)}, {vr(KB+4,4)}, {vr(aK,16)}")
    for j in range(8):
        a(f"v_cvt_pk_bf16_f32 v{WF+j}, v{aV+2*j}, v{aV+2*j+1}")
    a(f"s_mov_b64 exec, s[{sM0}:{sM1}]")
    a(f"ds_write_b128 v{vVSW}, v[{WF}:{WF+3}]")
    a(f"ds_write_b128 v{vVSW}, v[{WF+4}:{WF+7}] offset:1024")
    a(f"s_mov_b64 exec, -1")
    softmax_prep(a, aK)
    exps(a, aK)
    def tree_sum(base, dst, t):
        a(f"v_add_f32 v{t[0]}, v{base}, v{base+1}")
        a(f"v_add_f32 v{t[1]}, v{base+2}, v{base+3}")
        a(f"v_add_f32 v{t[2]}, v{base+4}, v{base+5}")
        a(f"v_add_f32 v{t[3]}, v{base+6}, v{base+7}")
        a(f"v_add_f32 v{t[0]}, v{t[0]}, v{base+8}")
        a(f"v_add_f32 v{t[1]}, v{t[1]}, v{base+9}")
        a(f"v_add_f32 v{t[2]}, v{t[2]}, v{base+10}")
        a(f"v_add_f32 v{t[3]}, v{t[3]}, v{base+11}")
        a(f"v_add_f32 v{t[0]}, v{t[0]}, v{base+12}")
        a(f"v_add_f32 v{t[1]}, v{t[1]}, v{base+13}")
        a(f"v_add_f32 v{t[2]}, v{t[2]}, v{t[3]}")
        a(f"v_add_f32 v{t[0]}, v{t[0]}, v{t[1]}")
        a(f"v_add_f32 v{dst}, v{t[0]}, v{t[2]}")
    tree_sum(EPL, vT0, [vT2, vT3, vT4, vT5])
    tree_sum(EMI, vT1, [vT2, vT3, vT4, vT5])
    PP, PM = WF + 8, WF + 16
    a(f"v_mov_b32 v{PP+7}, 0")
    a(f"v_mov_b32 v{PM+7}, 0")
    a(f"v_permlane32_swap_b32 v{vT0}, v{vT1}")
    a("s_nop 1")
    a(f"v_add_f32 v{vT0}, v{vT0}, v{vT1}")
    a(f"v_rcp_f32 v{vT0}, v{vT0}")
    a("s_nop 0")
    a(f"v_mov_b32 v{vT1}, v{vT0}")
    a("s_nop 1")
    a(f"v_permlane32_swap_b32 v{vT0}, v{vT1}")
    a("s_nop 1")
    for sg, (src, base, rr) in enumerate(((EPL, PP, vT0), (EMI, PM, vT1))):
        for r in range(14):
            a(f"v_mul_f32 v{src+r}, v{src+r}, v{rr}")
        for j in range(7):
            a(f"v_cvt_pk_bf16_f32 v{base+j}, v{src+2*j}, v{src+2*j+1}")
            if j % 2 == 1: a(f"ds_write_b64 v{PHA[4*sg + j//2]}, v[{base+j-1}:{base+j}]")
        a(f"ds_write_b64 v{PHA[4*sg + 3]}, v[{base+6}:{base+7}]")
    a(f"s_waitcnt vmcnt({0 if cfg.wqlate else 3}) lgkmcnt(0)")
    stamp(a, cfg, "C1pre")
    a("s_barrier")
    stamp(a, cfg, "C1end")
    a.c("================ phase C2")
    a(f"v_readfirstlane_b32 s{sTAG}, v{vEPOCH}")
    a(f"s_cmp_ge_u32 s{sWV}, 4")
    a("s_cbranch_scc1 L_c2_hi")
    BF = 96
    def c2_reads(k):
        t4, s = k >> 1, k & 1
        a(f"ds_read_b64_tr_b16 v[{WF+4*k}:{WF+4*k+1}], v{vC2A0} offset:{t4*4096 + s*2048}")
        a(f"ds_read_b64_tr_b16 v[{WF+4*k+2}:{WF+4*k+3}], v{vC2A1} offset:{t4*4096 + s*2048}")
        a(f"ds_read_b128 v[{BF+4*k}:{BF+4*k+3}], v{vC2B} offset:{k*1024}")
    for k in range(5): c2_reads(k)
    a(f"s_lshl_b32 s{sT}, s{sHP}, 4")
    a(f"s_add_u32 s{sT}, s{sT}, s{sTB}")
    a(f"s_lshl_b32 s{sT}, s{sT}, 3")
    a(f"s_lshl_b32 s{sU}, s{sWV}, 1")
    a(f"s_add_u32 s{sT}, s{sT}, s{sU}")
    a(f"s_lshl_b32 s{sT}, s{sT}, 10")
    a(f"s_add_u32 s{sT}, s{sT}, {WS_P}")
    for k in range(8):
        rem = min(5, 8 - k) - 1
        a(f"s_waitcnt lgkmcnt({3*rem})")
        a(f"v_mfma_f32_32x32x16_bf16 {vr(aK,16)}, {vr(WF+4*k,4)}, {vr(BF+4*k,4)}, {'0' if k == 0 else vr(aK,16)}")
        if k + 5 < 8: c2_reads(k + 5)
    a(f"s_lshl_b32 s{sT4}, s{sHP}, 4")
    a(f"s_add_u32 s{sT4}, s{sT4}, s{sTB}")
    a(f"s_lshl_b32 s{sT4}, s{sT4}, 7")
    a(f"s_add_u32 s{sT4}, s{sT4}, {WS_FLAG1}")
    a(f"v_mov_b32 v{vT2}, {L_CNT}")
    a(f"v_mov_b32 v{vT3}, 1")
    a("s_nop 5")
    for j in range(8):
        a(f"v_cvt_pk_bf16_f32 v{KB+j}, v{aK+2*j}, v{aK+2*j+1}")
    a(f"buffer_store_dwordx4 v[{KB}:{KB+3}], v{vL16}, s[{SWS}:{SWS+3}], s{sT} offen sc0 sc1")
    a(f"buffer_store_dwordx4 v[{KB+4}:{KB+7}], v{vL16}, s[{SWS}:{SWS+3}], s{sT} offen offset:1024 sc0 sc1")
    stamp(a, cfg, "C2end")
    RP = 180
    def poll_issue(soff_code, pw=0):
        lab = f"L_pi{len(a.l)}"
        a(f"s_cmp_lg_u32 s{sWV}, {pw}")
        a(f"s_cbranch_scc1 {lab}")
        soff_code()
        a(f"v_and_b32 v{RP+1}, 15, v{vLANE}")
        a(f"v_lshlrev_b32 v{RP+1}, 7, v{RP+1}")
        a(f"s_mov_b32 exec_lo, 0xffff")
        a(f"s_mov_b32 exec_hi, 0")
        a(f"buffer_load_dword v{RP}, v{RP+1}, s[{SWS}:{SWS+3}], s{sPOLL} offen sc0 sc1")
        a(f"s_mov_b64 exec, -1")
        a.label(lab)
    def poll(lab, pw=0):
        a(f"s_cmp_lg_u32 s{sWV}, {pw}")
        a(f"s_cbranch_scc1 {lab}_done")
        a(f"s_mov_b32 s{sSPIN}, 0")
        a(f"s_mov_b32 exec_lo, 0xffff")
        a(f"s_mov_b32 exec_hi, 0")
        a.label(lab)
        a("s_waitcnt vmcnt(0)")
        a(f"v_cmp_ne_u32 vcc, s{sTAG}, v{RP}")
        a(f"s_add_u32 s{sSPIN}, s{sSPIN}, 1")
        a(f"s_cmp_eq_u64 vcc, 0")
        a("s_cbranch_scc1 " + lab + "_ok")
        a(f"buffer_load_dword v{RP}, v{RP+1}, s[{SWS}:{SWS+3}], s{sPOLL} offen sc0 sc1")
        a(f"s_cmp_lt_u32 s{sSPIN}, {cfg.maxspin}")
        a(f"s_cbranch_scc1 {lab}")
        a.label(lab + "_ok")
        a(f"s_mov_b64 exec, -1")
        a.label(lab + "_done")
    def soff1():
        a(f"s_lshl_b32 s{sPOLL}, s{sHP}, 11")
        a(f"s_add_u32 s{sPOLL}, s{sPOLL}, {WS_FLAG1}")
    QR = 5
    QPOS = [4, 5, 6, 0, 1, 2, 3]
    MID = 16 - QR
    wo_mid = [c for c in range(12) if c not in cfg.wo_c2 and c not in cfg.wo_late]
    def q_gemm(cls):
        def q_reads(k):
            i, s = QPOS[k >> 2], k & 3
            b = WF + 4 * (k % QR)
            for u in range(2):
                a(f"ds_read_b64_tr_b16 v[{b+2*u}:{b+2*u+1}], v{vWQ} offset:{8192*i + (16*s + 4*u)*128}")
            a(f"s_mov_b64 exec, s[{sM0}:{sM1}]")
            a(f"ds_read_b128 v[{b}:{b+3}], v{vGA} offset:{i*128 + s*32}")
            a(f"s_mov_b64 exec, -1")
        a(f"s_mov_b32 s{sM0}, 0x10000000")
        a(f"s_mov_b32 s{sM1}, 0x10000000")
        first = 1 if cls == 0 else MID + 1
        sched = {}
        for n, c in enumerate(wo_mid):
            sched[first + (n * (27 - first)) // max(1, len(wo_mid))] = c
        for k in range(QR): q_reads(k)
        if cls == 0:
            a(f"s_waitcnt vmcnt(0) lgkmcnt(0)")
            a(f"s_mov_b64 exec, 1")
            a(f"ds_add_rtn_u32 v{vT0}, v{vT2}, v{vT3}")
            a(f"v_mov_b32 v{vT1}, s{sTAG}")
            a("s_waitcnt lgkmcnt(0)")
            a(f"v_readfirstlane_b32 s{sA}, v{vT0}")
            a(f"v_mov_b32 v{vT0}, 0")
            a("s_nop 2")
            a(f"s_cmp_eq_u32 s{sA}, 3")
            a("s_cbranch_scc0 L_noflag1")
            a(f"buffer_store_dword v{vT1}, v{vT0}, s[{SWS}:{SWS+3}], s{sT4} offen sc0 sc1")
            a.label("L_noflag1")
            a("s_mov_b64 exec, -1")
            stamp(a, cfg, "flag1")
            a("s_barrier")
            stamp(a, cfg, "qmid")
        for k in range(28):
            rem = min(QR, 28 - k) - 1
            b = WF + 4 * (k % QR)
            xi = 4 * QPOS[k >> 2] + (k & 3)
            a(f"s_waitcnt lgkmcnt({3*rem})")
            a(f"v_mfma_f32_32x32x16_bf16 {vr(aQ,16)}, {vr(b,4)}, {vr(XF+4*xi,4)}, {'0' if k == 0 else vr(aQ,16)}")
            if cls == 1 and k == MID:
                a(f"s_waitcnt vmcnt({1 + 2*len(cfg.wo_c2)})")
                a("s_barrier")
                stamp(a, cfg, "qmid")
            if k + QR < 28: q_reads(k + QR)
            if k in sched: wo_op(a, sched[k])
            if cls == 1 and k == cfg.poll1at: poll_issue(soff1, 4)
    a(f"s_add_u32 s{sTAG}, s{sTAG}, 1")
    q_gemm(0)
    a("s_branch L_q_done")
    a.label("L_c2_hi")
    a(f"s_add_u32 s{sTAG}, s{sTAG}, 1")
    vDQ_live[0] = True
    for p in (1, 2, 3):
        wq_op(a, p)(); wq_op(a, p, partner=True)()
    issue_touch(a, cfg)
    for c in cfg.wo_c2:
        wo_op(a, c); wo_op(a, c, partner=True)
    stamp(a, cfg, "C2end")
    q_gemm(1)
    a.label("L_q_done")
    stamp(a, cfg, "qGEMM")
    a.c("================ sync 1")
    poll("L_poll1", 4)
    a("s_barrier")
    stamp(a, cfg, "sync1")
    a.c("================ phase 2")
    PL = XF
    a(f"s_lshl_b32 s{sT}, s{sHP}, 17")
    a(f"s_lshl_b32 s{sU}, s{sWV}, 10")
    a(f"s_add_u32 s{sT}, s{sT}, s{sU}")
    a(f"s_add_u32 s{sT}, s{sT}, {WS_P}")
    a(f"s_lshl_b32 s{sU}, s{sTB}, 13")
    qparts = split_parts(lambda t: q_features(t, cfg), 16)
    for t in range(16):
        a(f"s_add_u32 s{sT2}, s{sT}, s{sU}")
        a(f"buffer_load_dwordx4 v[{PL+4*t}:{PL+4*t+3}], v{vL16}, s[{SWS}:{SWS+3}], s{sT2} offen sc0 sc1")
        if t < 15:
            a(f"s_add_u32 s{sU}, s{sU}, 8192")
            a(f"s_and_b32 s{sU}, s{sU}, 0x1ffff")
        a.l += qparts[t]
        if cfg.fair and t % cfg.fair == cfg.fair - 1 and t < 15: a("s_barrier")
    late = list(cfg.wo_late) + [12, 13]
    NWO2 = len(late)
    for c in late: wo_op(a, c)
    ACC = 16
    for j in range(8): a(f"v_mov_b32 v{ACC+j}, 0")
    a(f"s_and_b32 s{sU}, s{sWV}, 3")
    a(f"s_lshl_b32 s{sT3}, s{sTB}, 2")
    a(f"s_add_u32 s{sT3}, s{sT3}, s{sU}")
    a(f"s_lshl_b32 s{sT3}, s{sT3}, 1")
    a(f"s_add_u32 s{sT3}, s{sT3}, s{sBR}")
    a(f"s_lshl_b32 s{sT3}, s{sT3}, 4")
    a(f"s_lshl_b32 s{sU}, s{sH2}, 1")
    a(f"s_add_u32 s{sT3}, s{sT3}, s{sU}")
    a(f"s_lshr_b32 s{sU}, s{sWV}, 2")
    a(f"s_add_u32 s{sT3}, s{sT3}, s{sU}")
    a(f"s_lshl_b32 s{sT3}, s{sT3}, 11")
    a(f"s_add_u32 s{sT3}, s{sT3}, {WS_O}")
    a(f"s_lshl_b32 s{sT4}, s{sTB}, 4")
    a(f"s_add_u32 s{sT4}, s{sT4}, s{sHP}")
    a(f"s_lshl_b32 s{sT4}, s{sT4}, 7")
    a(f"s_add_u32 s{sT4}, s{sT4}, {WS_FLAG2}")
    a(f"s_lshl_b32 s{sU}, s{sWV}, 10")
    a(f"s_add_u32 s{sU}, s{sU}, {L_KVF}")
    a(f"v_add_u32 v{vT2}, s{sU}, v{vL16}")
    a(f"s_lshr_b32 s{sU}, s{sWV}, 2")
    a(f"s_lshl_b32 s{sU}, s{sU}, 12")
    a(f"s_add_u32 s{sU}, s{sU}, {L_KVF}")
    a(f"v_add_u32 v{vT3}, s{sU}, v{vL16}")
    a(f"v_mov_b32 v{vT4}, 0x358637bd")
    a(f"v_mov_b32 v{vT5}, s{sTAG}")
    a(f"s_mov_b32 s{sM0}, 0x88000000")
    a(f"s_mov_b32 s{sM1}, 0x88000000")
    stamp(a, cfg, "P2iss")
    for t in range(16):
        a(f"s_waitcnt vmcnt({NWO2 + 15 - t})")
        for d in range(4):
            a(f"v_dot2c_f32_bf16 v{ACC+2*d}, s{sC_LO}, v{PL+4*t+d}")
            a(f"v_dot2c_f32_bf16 v{ACC+2*d+1}, s{sC_HI}, v{PL+4*t+d}")
    stamp(a, cfg, "P2sum")
    a("s_nop 1")
    for d in range(4):
        a(f"v_cvt_pk_bf16_f32 v{24+d}, v{ACC+2*d}, v{ACC+2*d+1}")
    a(f"s_mov_b64 exec, s[{sM0}:{sM1}]")
    for d in range(4):
        a(f"v_mov_b32 v{24+d}, 0x3f803f80")
    a(f"s_mov_b64 exec, -1")
    a(f"ds_write_b128 v{vT2}, v[24:27]")
    a("s_waitcnt lgkmcnt(0)")
    a("s_barrier")
    for k in (0, 2, 1, 3):
        a(f"ds_read_b128 v[{WF+4*k}:{WF+4*k+3}], v{vT3} offset:{k*1024}")
    DP, DM = 16, 32
    a("s_waitcnt lgkmcnt(3)")
    a(f"v_mfma_f32_32x32x16_bf16 {vr(DP,16)}, {vr(WF,4)}, {vr(EP,4)}, 0")
    a("s_waitcnt lgkmcnt(2)")
    a(f"v_mfma_f32_32x32x16_bf16 {vr(DM,16)}, {vr(WF+8,4)}, {vr(EM,4)}, 0")
    a("s_waitcnt lgkmcnt(1)")
    a(f"v_mfma_f32_32x32x16_bf16 {vr(DP,16)}, {vr(WF+4,4)}, {vr(EP+4,4)}, {vr(DP,16)}")
    a("s_waitcnt lgkmcnt(0)")
    a(f"v_mfma_f32_32x32x16_bf16 {vr(DM,16)}, {vr(WF+12,4)}, {vr(EM+4,4)}, {vr(DM,16)}")
    a(f"v_mov_b32 v{KB+7}, 0")
    a(f"v_mov_b32 v{vJUNK}, 0")
    a("s_nop 9")
    a(f"v_mul_f32 v{vT1}, v{DP+14}, v{DM+15}")
    a(f"v_mul_f32 v{vT2}, v{DP+15}, v{DM+15}")
    a(f"v_fmac_f32 v{vT1}, v{DM+14}, v{DP+15}")
    a(f"v_fmac_f32 v{vT1}, v{vT2}, v{vT4}")
    a(f"v_rcp_f32 v{vT1}, v{vT1}")
    a("s_nop 0")
    a(f"v_mul_f32 v{vT1}, v{vT1}, v{vG}")
    a(f"v_mul_f32 v{vT2}, v{DM+15}, v{vT1}")
    a(f"v_mul_f32 v{vT3}, v{DP+15}, v{vT1}")
    for j in range(7):
        for r in (2*j, 2*j+1):
            a(f"v_mul_f32 v{DP+r}, v{DP+r}, v{vT2}")
        for r in (2*j, 2*j+1):
            a(f"v_fmac_f32 v{DP+r}, v{DM+r}, v{vT3}")
        a(f"v_cvt_pk_bf16_f32 v{KB+j}, v{DP+2*j}, v{DP+2*j+1}")
        if j == 3:
            a(f"buffer_store_dwordx4 v[{KB}:{KB+3}], v{vL16}, s[{SWS}:{SWS+3}], s{sT3} offen sc0 sc1")
    a(f"buffer_store_dwordx4 v[{KB+4}:{KB+7}], v{vL16}, s[{SWS}:{SWS+3}], s{sT3} offen offset:1024 sc0 sc1")
    stamp(a, cfg, "P2st")
    a("s_waitcnt vmcnt(0)")
    a("s_barrier")
    a(f"s_cmp_lg_u32 s{sWV}, 1")
    a("s_cbranch_scc1 L_noflag2")
    a("s_mov_b64 exec, 1")
    a(f"buffer_store_dword v{vT5}, v{vJUNK}, s[{SWS}:{SWS+3}], s{sT4} offen sc0 sc1")
    a("s_mov_b64 exec, -1")
    a.label("L_noflag2")
    stamp(a, cfg, "P2end")
    a(f"s_cmp_ge_u32 s{sJ}, 28")
    a("s_cbranch_scc1 L_fin")
    a.c("================ phase 3")
    AD0, AD1, AS0, AS1 = 176, 177, 178, 179
    OF = 192
    WR = 48
    ACC3 = 16
    a(f"v_lshrrev_b32 v{vT0}, 5, v{vLANE}")
    a(f"v_and_b32 v{vT1}, 15, v{vLANE}")
    a(f"v_lshrrev_b32 v{vT2}, 2, v{vT1}")
    a(f"v_and_b32 v{vT1}, 3, v{vT1}")
    a(f"v_lshlrev_b32 v{vT1}, 3, v{vT1}")
    a(f"v_and_b32 v{vT3}, 16, v{vLANE}")
    a(f"v_lshl_add_u32 v{vT1}, v{vT3}, 1, v{vT1}")
    a(f"s_lshr_b32 s{sU}, s{sWV}, 2")
    a(f"s_mul_i32 s{sT}, s{sU}, 448")
    a(f"s_lshr_b32 s{sU}, s{sWV}, 1")
    a(f"s_and_b32 s{sU}, s{sU}, 1")
    a(f"s_mul_i32 s{sU}, s{sU}, 224")
    a(f"s_add_u32 s{sT}, s{sT}, s{sU}")
    a(f"s_mul_i32 s{sU}, s{sR2}, 28")
    a(f"s_add_u32 s{sT}, s{sT}, s{sU}")
    a(f"s_lshl_b32 s{sT}, s{sT}, 7")
    a(f"v_lshl_add_u32 v{vT3}, v{vT0}, 2, v{vT2}")
    a(f"v_lshlrev_b32 v{vT3}, 7, v{vT3}")
    a(f"v_and_b32 v{vT4}, 2, v{vT2}")
    a(f"v_lshlrev_b32 v{vT4}, 5, v{vT4}")
    a(f"v_xor_b32 v{vT5}, v{vT1}, v{vT4}")
    a(f"v_add_u32 v{vT3}, v{vT3}, v{vT5}")
    a(f"v_add_u32 v{AD0}, s{sT}, v{vT3}")
    a(f"v_xor_b32 v{AD1}, 64, v{AD0}")
    a(f"v_lshl_add_u32 v{vT3}, v{vT0}, 1, v{vT2}")
    a(f"v_add_u32 v{vT5}, 24, v{vT3}")
    a(f"v_add_u32 v{vT3}, 20, v{vT3}")
    a(f"v_cmp_gt_u32 vcc, 2, v{vT2}")
    a(f"v_lshlrev_b32 v{vT0}, 6, v{vT0}")
    a(f"v_xor_b32 v{vT4}, v{vT4}, v{vT0}")
    a(f"v_cndmask_b32 v{vT3}, v{vT3}, v{vT5}, vcc")
    a(f"v_lshlrev_b32 v{vT3}, 7, v{vT3}")
    a(f"v_xor_b32 v{vT5}, v{vT1}, v{vT4}")
    a(f"v_add_u32 v{vT3}, v{vT3}, v{vT5}")
    a(f"v_add_u32 v{AS0}, s{sT}, v{vT3}")
    a(f"v_xor_b32 v{AS1}, 64, v{AS0}")
    def wo_reads(st):
        hl, gi = st >> 1, st & 1
        if gi == 0 and hl >= 2:
            a(f"s_cmp_eq_u32 s{sR2}, {8 - hl}")
            a(f"s_cbranch_scc0 L_nowrap{hl}")
            for k in range(4):
                a(f"v_subrev_u32 v{AD0+k}, {8*3584}, v{AD0+k}")
            a.label(f"L_nowrap{hl}")
        b = WR + 8 * st
        for c2 in range(2):
            a(f"ds_read_b64_tr_b16 v[{b+4*c2}:{b+4*c2+1}], v{AD0+c2} offset:{hl*3584 + 16*gi*128}")
            if gi == 0:
                a(f"ds_read_b64_tr_b16 v[{b+4*c2+2}:{b+4*c2+3}], v{AD0+c2} offset:{hl*3584 + 8*128}")
            else:
                a(f"ds_read_b64_tr_b16 v[{b+4*c2+2}:{b+4*c2+3}], v{AS0+c2} offset:{hl*3584}")
    a(f"s_cmp_eq_u32 s{sWV}, 0")
    a("s_cbranch_scc1 L_w0_poll_first") if cfg.pollfirst else None
    def soff2():
        a(f"s_lshr_b32 s{sPOLL}, s{sT64}, 1")
        a(f"s_lshl_b32 s{sPOLL}, s{sPOLL}, 11")
        a(f"s_add_u32 s{sPOLL}, s{sPOLL}, {WS_FLAG2}")
    for st in range(16):
        wo_reads(st)
        if st == cfg.poll2at: poll_issue(soff2)
    a(f"s_lshl_b32 s{sT2}, s{sT64}, 1")
    a(f"s_and_b32 s{sU}, s{sWV}, 1")
    a(f"s_add_u32 s{sT2}, s{sT2}, s{sU}")
    a(f"s_lshl_b32 s{sT2}, s{sT2}, 1")
    a(f"s_lshr_b32 s{sU}, s{sWV}, 2")
    a(f"s_add_u32 s{sT2}, s{sT2}, s{sU}")
    a(f"s_lshl_b32 s{sT2}, s{sT2}, 15")
    a(f"s_lshr_b32 s{sU}, s{sWV}, 1")
    a(f"s_and_b32 s{sU}, s{sU}, 1")
    a(f"s_lshl_b32 s{sU}, s{sU}, 14")
    a(f"s_add_u32 s{sT2}, s{sT2}, s{sU}")
    a(f"s_add_u32 s{sT2}, s{sT2}, {WS_O}")
    a(f"s_and_b32 s{sU}, s{sWV}, 1")
    a(f"s_lshl_b32 s{sU}, s{sU}, 15")
    a(f"s_lshr_b32 s{sT4}, s{sWV}, 1")
    a(f"s_lshl_b32 s{sT3}, s{sT4}, 11")
    a(f"s_add_u32 s{sT3}, s{sT3}, s{sU}")
    a(f"v_add_u32 v{vT2}, s{sT3}, v{vL16}")
    a(f"s_lshl_b32 s{sT3}, s{sT4}, 13")
    a(f"s_add_u32 s{sT3}, s{sT3}, s{sU}")
    a(f"v_add_u32 v{vT4}, s{sT3}, v{vL16}")
    a(f"s_lshl_b32 s{sT3}, s{sT64}, 1")
    a(f"s_and_b32 s{sU}, s{sWV}, 1")
    a(f"s_add_u32 s{sT3}, s{sT3}, s{sU}")
    a(f"s_mul_i32 s{sT3}, s{sT3}, {32*896}")
    a(f"s_add_u32 s{sT3}, s{sT3}, s{sCT}")
    a(f"s_lshl_b32 s{sU}, s{sT4}, 5")
    a(f"s_add_u32 s{sT3}, s{sT3}, s{sU}")
    a(f"v_and_b32 v{vT3}, 31, v{vLANE}")
    a(f"v_mul_u32_u24 v{vT3}, 896, v{vT3}")
    a(f"v_lshrrev_b32 v{vT5}, 5, v{vLANE}")
    a(f"v_lshl_add_u32 v{vT3}, v{vT5}, 4, v{vT3}")
    stamp(a, cfg, "woiss")
    poll("L_poll2")
    a("s_waitcnt lgkmcnt(0)")
    stamp(a, cfg, "sync2pre")
    a("s_barrier")
    stamp(a, cfg, "sync2")
    a(f"s_lshl_b32 s{sU}, s{sR2}, 11")
    for st in range(16):
        a(f"s_add_u32 s{sT}, s{sT2}, s{sU}")
        a(f"buffer_load_dwordx4 v[{OF+4*st}:{OF+4*st+3}], v{vL16}, s[{SWS}:{SWS+3}], s{sT} offen sc0 sc1")
        if st < 15:
            a(f"s_add_u32 s{sU}, s{sU}, 1024")
            a(f"s_and_b32 s{sU}, s{sU}, 0x3fff")
        if cfg.fair3 and st % cfg.fair3 == cfg.fair3 - 1 and st < 15: a("s_barrier")
    stamp(a, cfg, "P3iss")
    for st in range(16):
        b = WR + 8 * st
        a(f"s_waitcnt vmcnt({15-st})")
        for c2 in range(2):
            a(f"v_mfma_f32_32x32x16_bf16 {vr(ACC3+16*c2,16)}, {vr(b+4*c2,4)}, {vr(OF+4*st,4)}, {'0' if st == 0 else vr(ACC3+16*c2,16)}")
    stamp(a, cfg, "P3mfma")
    a(f"s_cmp_eq_u32 s{sT4}, 0"); a("s_cbranch_scc1 L_rs0")
    a(f"s_cmp_eq_u32 s{sT4}, 1"); a("s_cbranch_scc1 L_rs1")
    a(f"s_cmp_eq_u32 s{sT4}, 2"); a("s_cbranch_scc1 L_rs2")
    for kq in (3, 0, 1, 2):
        if kq != 3: a.label(f"L_rs{kq}")
        a("s_nop 9")
        for q in range(4):
            if q == kq: continue
            r0 = ACC3 + 8 * q
            a(f"ds_write_b128 v{vT2}, v[{r0}:{r0+3}] offset:{q*8192}")
            a(f"ds_write_b128 v{vT2}, v[{r0+4}:{r0+7}] offset:{q*8192+1024}")
        a("s_waitcnt lgkmcnt(0)")
        if kq != 0:
            for j in range(8): a(f"v_mov_b32 v{ACC3+j}, v{ACC3+8*kq+j}")
        a("s_barrier")
        k = 0
        for src in range(4):
            if src == kq: continue
            a(f"ds_read_b128 v[{48+8*k}:{48+8*k+3}], v{vT4} offset:{src*2048}")
            a(f"ds_read_b128 v[{48+8*k+4}:{48+8*k+7}], v{vT4} offset:{src*2048+1024}")
            k += 1
        if kq != 2: a("s_branch L_rsdone")
    a.label("L_rsdone")
    a("s_waitcnt lgkmcnt(4)")
    for j in range(8): a(f"v_add_f32 v{ACC3+j}, v{ACC3+j}, v{48+j}")
    a("s_waitcnt lgkmcnt(2)")
    for j in range(8): a(f"v_add_f32 v{ACC3+j}, v{ACC3+j}, v{56+j}")
    a("s_waitcnt lgkmcnt(0)")
    for j in range(8): a(f"v_add_f32 v{ACC3+j}, v{ACC3+j}, v{64+j}")
    for j in range(4):
        a(f"v_cvt_pk_bf16_f32 v{40+j}, v{ACC3+2*j}, v{ACC3+2*j+1}")
    a("s_nop 1")
    a(f"v_permlane32_swap_b32 v40, v42")
    a(f"v_permlane32_swap_b32 v41, v43")
    a("s_nop 1")
    a(f"buffer_store_dwordx4 v[40:43], v{vT3}, s[{SOUT}:{SOUT+3}], s{sT3} offen")
    a(f"s_or_b32 s{sT}, s2, s{sWV}")
    a(f"s_cmp_lg_u32 s{sT}, 0")
    a("s_cbranch_scc1 L_fin")
    a(f"v_mov_b32 v{vT1}, {WS_EPOCH}")
    a(f"v_mov_b32 v{vT2}, s{sTAG}")
    a("s_mov_b64 exec, 1")
    a(f"buffer_store_dword v{vT2}, v{vT1}, s[{SWS}:{SWS+3}], 0 offen sc0 sc1")
    a("s_mov_b64 exec, -1")
    a.label("L_fin")
    if cfg.dbg:
        stamp(a, cfg, "fin")
        a("s_waitcnt vmcnt(0)")
        stamp(a, cfg, "end")
        a("s_memrealtime s[98:99]")
        a("s_waitcnt lgkmcnt(0)")
        a(f"v_readlane_b32 s{sA}, v{vPROF}, 63")
        a("s_nop 3")
        a(f"s_sub_u32 s{sA}, s98, s{sA}")
        a(f"v_writelane_b32 v{vPROF}, s{sA}, 15")
        a(f"v_readlane_b32 s{sA}, v{vPROF}, 0")
        a("s_nop 3")
        a(f"v_subrev_u32 v{vT1}, s{sA}, v{vPROF}")
        a(f"v_readlane_b32 s{sB}, v{vPROF}, 15")
        a("s_nop 3")
        a(f"v_writelane_b32 v{vT1}, s{sB}, 15")
        a(f"s_lshl_b32 s{sT}, s{sWV}, 16")
        a(f"s_or_b32 s{sT}, s{sT}, s2")
        a(f"s_cmp_lg_u32 s{sT}, {cfg.dbgwg}")
        a("s_cbranch_scc1 L_nodbg")
        srd(a, SMI, s_DBG, 256)
        a(f"v_lshlrev_b32 v{vT0}, 2, v{vLANE}")
        a(f"v_cmp_gt_u32 vcc, 16, v{vLANE}")
        a(f"s_and_saveexec_b64 s[{sEX0}:{sEX0+1}], vcc")
        a(f"buffer_store_dword v{vT1}, v{vT0}, s[{SMI}:{SMI+3}], 0 offen")
        a("s_mov_b64 exec, -1")
        a.label("L_nodbg")
    if cfg.prof:
        stamp(a, cfg, "fin")
        a("s_waitcnt vmcnt(0)")
        stamp(a, cfg, "end")
        a("s_memrealtime s[98:99]")
        a("s_waitcnt lgkmcnt(0)")
        a(f"v_writelane_b32 v{vPROF}, s98, 62")
        a(f"s_lshl_b32 s{sT}, s2, 3")
        a(f"s_add_u32 s{sT}, s{sT}, s{sWV}")
        a(f"s_lshl_b32 s{sT}, s{sT}, 8")
        a(f"s_add_u32 s{sT}, s{sT}, {WS_PROF}")
        a(f"v_lshlrev_b32 v{vT0}, 2, v{vLANE}")
        a(f"buffer_store_dword v{vPROF}, v{vT0}, s[{SWS}:{SWS+3}], s{sT} offen")
        open(cfg.o + ".stamps", "w").write("\n".join(STAMPS))
    a.label("L_exit")
    a("s_endpgm")
    a.label("L_end")
    return a

def wrap(a, cfg):
    hdr = open("gated_mix__linear_kernel_hedgehog__linear_kernel_hedgehog__prompt.s.ref").read().split("\n")
    out = []
    for ln in hdr:
        if ln.startswith("; @launch"):
            out.append("; @launch grid=(256,1,1) block=(512,1,1) lds=163840")
        elif ln.startswith(";"):
            out.append(ln)
        else:
            break
    out += ['.amdgcn_target "amdgcn-amd-amdhsa--gfx950"', ".text", f".globl {KNAME}", ".p2align 8", f".type {KNAME},@function",
            ".set CODE_KB_LEFT, ((L_end - L_pc) / 1024) - 1", a.text(),
            '.section .rodata,"a"', ".p2align 6", f".amdhsa_kernel {KNAME}",
            "  .amdhsa_next_free_vgpr 256", "  .amdhsa_next_free_sgpr 102", "  .amdhsa_accum_offset 256",
            "  .amdhsa_group_segment_fixed_size 0", "  .amdhsa_kernarg_size 96", "  .amdhsa_user_sgpr_count 2",
            "  .amdhsa_user_sgpr_kernarg_segment_ptr 1", "  .amdhsa_system_sgpr_workgroup_id_x 1", ".end_amdhsa_kernel"]
    return "\n".join(out) + "\n"

if __name__ == "__main__":
    ap = argparse.ArgumentParser()
    ap.add_argument("--prof", action="store_true")
    ap.add_argument("--flagstep", type=int, default=6)
    ap.add_argument("--fair", type=int, default=4)
    ap.add_argument("--fair3", type=int, default=0)
    ap.add_argument("--wolate", default="")
    ap.add_argument("--woc2", default="6,7,8,9,10,11")
    ap.add_argument("--maxspin", type=int, default=200000)
    ap.add_argument("--sleep", type=int, default=0)
    ap.add_argument("--pollfirst", action="store_true")
    ap.add_argument("--warm", type=int, default=-1)
    ap.add_argument("--dbg", action="store_true")
    ap.add_argument("--dbgwg", type=int, default=0)
    ap.add_argument("--poll1at", type=int, default=24)
    ap.add_argument("--poll2at", type=int, default=8)
    ap.add_argument("--wqlate", action="store_true")
    ap.add_argument("--pp", type=int, default=0)
    ap.add_argument("--exp", default="")
    ap.add_argument("--nopf", action="store_true")
    ap.add_argument("-o", default="k.s")
    cfg = ap.parse_args()
    cfg.wo_c2 = [int(x) for x in cfg.woc2.split(",") if x]
    cfg.wo_late = [int(x) for x in cfg.wolate.split(",") if x]
    a = gen(cfg)
    a.l = [x for x in a.l if x is not None]
    txt = wrap(a, cfg)
    open(cfg.o, "w").write(txt)
    import hazard
    errs = hazard.check(a.text())
    for e in errs: print("HAZARD", e)
    print("wrote", cfg.o, len(txt), "bytes;", len(errs), "hazards")
```
